```python
import torch

def _softmax(x, axis=-1):
    return torch.softmax(x, dim=axis)

def _gelu(x):
    return torch.nn.functional.gelu(x, approximate='tanh')

def _silu(x):
    return torch.nn.functional.silu(x)

def _sigmoid(x):
    return torch.sigmoid(x)

def _layernorm(x, axis=-1, eps=1e-05):
    m = x.mean(dim=axis, keepdim=True)
    v = x.var(dim=axis, keepdim=True, unbiased=False)
    return (x - m) / torch.sqrt(v + eps)

def _scatter_add(tgt, idx, src, axis=0):
    return tgt.clone().index_add_(axis, idx, src)

def _segment_sum(src, seg, n):
    out = torch.zeros((n,) + src.shape[1:], dtype=src.dtype)
    return out.index_add_(0, seg, src)

def _pad(x, pw):
    flat = tuple((v for pair in reversed(pw) for v in pair))
    return torch.nn.functional.pad(x, flat)
kernel_name = 'adaLN_cond__gqa_block_cached__mixer_s_mlp__prompt'

def setup_inputs():

    _w = lambda a: (lambda t: t.to(torch.bfloat16) if t.is_floating_point() else t)(torch.as_tensor(a))

    def _A_setup():
        B, Sq, D = (1, 2048, 448)
        Hq, Hkv, Sk, Dh = (16, 8, 2048, 256)
        assert Hq % Hkv == 0, (Hq, Hkv)
        return {'x': _w((lambda *s: torch.randn(*s, dtype=torch.bfloat16) * 0.05)(B, Sq, D)), 'k_cache': _w((lambda *s: torch.randn(*s, dtype=torch.bfloat16) * 3.2)(B, Hkv, Sk, Dh)), 'v_cache': _w((lambda *s: torch.randn(*s, dtype=torch.bfloat16) * 0.4)(B, Hkv, Sk, Dh)), 'wq': _w((lambda *s: torch.randn(*s, dtype=torch.bfloat16) * 3.2)(D, Hq * Dh) * D ** (-0.5)), 'wo': _w((lambda *s: torch.randn(*s, dtype=torch.bfloat16) * 0.4)(Hq * Dh, D) * (Hq * Dh) ** (-0.5))}
    _A_in = _A_setup()

    def _B_setup():
        B, S, D, F = (1, 2048, 448, 1792)
        return {'x': _w((lambda *s: torch.randn(*s, dtype=torch.bfloat16) * 0.05)(B, S, D)), 'w1': _w((lambda *s: torch.randn(*s, dtype=torch.bfloat16) * 3.2)(D, D) * D ** (-0.5)), 'w2': _w((lambda *s: torch.randn(*s, dtype=torch.bfloat16) * 3.2)(D, D) * D ** (-0.5)), 'w3': _w((lambda *s: torch.randn(*s, dtype=torch.bfloat16) * 3.2)(D, F) * D ** (-0.5)), 'w4': _w((lambda *s: torch.randn(*s, dtype=torch.bfloat16) * 3.2)(F, D) * F ** (-0.5))}
    _B_in = _B_setup()
    return {'A_x': _A_in['x'], 'A_k_cache': _A_in['k_cache'], 'A_v_cache': _A_in['v_cache'], 'A_wq': _A_in['wq'], 'A_wo': _A_in['wo'], 'B_x': _B_in['x'], 'B_w1': _B_in['w1'], 'B_w2': _B_in['w2'], 'B_w3': _B_in['w3'], 'B_w4': _B_in['w4'], 'c': _w((lambda *s: torch.randn(*s, dtype=torch.bfloat16) * 0.1)(1, 448) * 8.0), 'w_mod': _w((lambda *s: torch.randn(*s, dtype=torch.bfloat16) * 0.1)(448, 6 * 448) * 448 ** (-0.5) * 8.0)}

def reference(A_x, A_k_cache, A_v_cache, A_wq, A_wo, B_x, B_w1, B_w2, B_w3, B_w4, c, w_mod):

    def _A_ref(x, k_cache, v_cache, wq, wo):
        B, Sq, D = x.shape
        Hq, Dh = (16, 256)
        Hkv = k_cache.shape[1]
        rep = Hq // Hkv
        q = (lambda x, *d: x.permute(*d))((x @ wq).reshape(B, Sq, Hq, Dh), 0, 2, 1, 3)
        k = (lambda x, n, axis: torch.repeat_interleave(x, n, dim=axis))(k_cache, rep, axis=1)
        v = (lambda x, n, axis: torch.repeat_interleave(x, n, dim=axis))(v_cache, rep, axis=1)
        scores = torch.einsum('bhqd,bhkd->bhqk', q, k) * Dh ** (-0.5)
        p = _softmax(scores, axis=-1)
        o = torch.einsum('bhqk,bhkd->bhqd', p, v)
        return (lambda x, *d: x.permute(*d))(o, 0, 2, 1, 3).reshape(B, Sq, Hq * Dh) @ wo

    def _B_ref(x, w1, w2, w3, w4):
        B, S, D = x.shape
        h = _gelu(_layernorm(x, axis=-1) @ w1)
        c = D // 4
        g0 = _pad(h[:, :, 0 * c:1 * c], ((0, 0), (1, 0), (0, 0)))[:, :S, :]
        g1 = _pad(h[:, :, 1 * c:2 * c], ((0, 0), (0, 1), (0, 0)))[:, 1:, :]
        g2 = _pad(h[:, :, 2 * c:3 * c], ((0, 0), (2, 0), (0, 0)))[:, :S, :]
        g3 = _pad(h[:, :, 3 * c:], ((0, 0), (0, 2), (0, 0)))[:, 2:, :]
        hs = torch.concatenate([g0, g1, g2, g3], axis=-1) @ w2
        x1 = x + hs
        h2 = _gelu(_layernorm(x1, axis=-1) @ w3) @ w4
        return x1 + h2
    x = A_x
    mod = (_silu(c) @ w_mod).reshape(c.shape[0], 6, 1, -1)
    sa, ca, ga, sb, cb, gb = (mod[:, 0].clone(), mod[:, 1].clone(), mod[:, 2].clone(), mod[:, 3].clone(), mod[:, 4].clone(), mod[:, 5].clone())
    h = _layernorm(x, axis=-1) * (1 + ca) + sa
    x = x + ga * _A_ref(h, A_k_cache, A_v_cache, A_wq, A_wo)
    h = _layernorm(x, axis=-1) * (1 + cb) + sb
    x = x + gb * _B_ref(h, B_w1, B_w2, B_w3, B_w4)
    return x
```

```python
import re

def v(i, n=1): return f'v{i}' if n == 1 else f'v[{i}:{i+n-1}]'
def a(i, n=1): return f'a{i}' if n == 1 else f'a[{i}:{i+n-1}]'
def s(i, n=1): return f's{i}' if n == 1 else f's[{i}:{i+n-1}]'

_REG = re.compile(r'^-?(?:abs\()?([vas])(?:(\d+)|\[(\d+):(\d+)\])\)?$')
def regs_of(op):
    op = op.strip()
    if op in ('vcc', 'exec', 'm0'): return {op}
    if op in ('vcc_lo', 'vcc_hi'): return {'vcc'}
    if op in ('exec_lo', 'exec_hi'): return {'exec'}
    m = _REG.match(op)
    if not m: return set()
    k = m.group(1)
    if m.group(2) is not None: return {f'{k}{m.group(2)}'}
    return {f'{k}{i}' for i in range(int(m.group(3)), int(m.group(4)) + 1)}

TRANS = ('v_exp_f32', 'v_log_f32', 'v_rcp_f32', 'v_rsq_f32', 'v_sqrt_f32', 'v_sin_f32', 'v_cos_f32')

class Inst:
    def __init__(self, text, tag=None):
        self.text = text.strip()
        self.tag = tag
        self.parse()
    def parse(self):
        t = self.text.split(';')[0].strip()
        self.defs, self.uses = set(), set()
        self.srcC = set(); self.srcAB = set()
        if t.endswith(':') or t == '' or t.startswith('.'):
            self.kind = 'label'; self.op = ''; return
        parts = t.split(None, 1)
        op = parts[0]; self.op = op
        rest = parts[1] if len(parts) > 1 else ''
        ops = [x.strip() for x in re.split(r',(?![^\[]*\])', rest)] if rest else []
        if ops:
            last = ops[-1].split()
            mods = last[1:]
            ops[-1] = last[0] if last else ''
        else: mods = []
        self.mods = mods
        R = [regs_of(x) for x in ops]
        if op.startswith('v_mfma'):
            self.kind = 'mfma'
            self.defs = R[0]; self.srcAB = R[1] | R[2]; self.srcC = R[3]
            self.uses = self.srcAB | self.srcC
            self.passes = 8 if '32x32' in op else 4
        elif op.startswith('ds_read'):
            self.kind = 'ds_read'; self.defs = R[0]; self.uses = R[1]
        elif op.startswith('ds_write'):
            self.kind = 'ds_write'; self.uses = set().union(*R)
        elif op.startswith('ds_bpermute') or op.startswith('ds_swizzle'):
            self.kind = 'ds_read'; self.defs = R[0]; self.uses = set().union(*R[1:])
        elif op.startswith('buffer_load'):
            if 'lds' in mods:
                self.kind = 'dma'; self.uses = set().union(*R) | {'m0'}
            else:
                self.kind = 'vload'; self.defs = R[0]; self.uses = set().union(*R[1:])
        elif op.startswith('buffer_store'):
            self.kind = 'vstore'; self.uses = set().union(*R); self.data = R[0]
        elif op.startswith('buffer_atomic'):
            self.kind = 'vstore'; self.uses = set().union(*R); self.data = R[0]
            if 'sc0' in mods: self.defs = R[0]
        elif op.startswith('buffer_'):
            self.kind = 'vmisc'
        elif op == 's_waitcnt': self.kind = 'wait'
        elif op == 's_barrier': self.kind = 'barrier'
        elif op == 's_nop': self.kind = 'nop'; self.n = int(ops[0]) + 1
        elif op.startswith('s_cbranch') or op == 's_branch' or op == 's_endpgm':
            self.kind = 'branch'
            if 'vcc' in op: self.uses = {'vcc'}
        elif op.startswith('s_load') or op.startswith('s_memtime') or op.startswith('s_memrealtime'):
            self.kind = 'smem'; self.defs = R[0]; self.uses = set().union(*R[1:]) if len(R) > 1 else set()
        elif op.startswith('s_cmp') or op in ('s_setprio', 's_sleep'):
            self.kind = 'salu'; self.uses = set().union(*R) if R else set()
        elif op.startswith('s_'):
            self.kind = 'salu'; self.defs = R[0]; self.uses = set().union(*R[1:]) if len(R) > 1 else set()
            if 'saveexec' in op: self.defs |= {'exec'}; self.uses |= {'exec'}
        elif op.startswith('v_'):
            self.kind = 'valu'
            base = op.replace('_e32', '').replace('_e64', '').replace('_dpp', '').replace('_sdwa', '')
            self.trans = base in TRANS
            self.dpp = any(m.startswith(('row_', 'quad_perm', 'wave_', 'row_bcast')) for m in mods)
            if base.startswith('v_cmp'):
                self.defs = R[0]; self.uses = set().union(*R[1:])
                if base.startswith('v_cmpx'): self.defs |= {'exec'}
            elif base.startswith('v_permlane'):
                self.defs = R[0] | R[1]; self.uses = R[0] | R[1]
            elif base in ('v_add_co_u32', 'v_sub_co_u32', 'v_addc_co_u32', 'v_div_scale_f32'):
                self.defs = R[0] | R[1]; self.uses = set().union(*R[2:])
            else:
                self.defs = R[0]; self.uses = set().union(*R[1:]) if len(R) > 1 else set()
                if base.startswith(('v_fmac', 'v_pk_fmac', 'v_writelane', 'v_dot2c')) or self.dpp: self.uses |= R[0]
                if base.startswith('v_cndmask') and len(ops) == 3: self.uses |= {'vcc'}
                if base.startswith('v_div_fmas'): self.uses |= {'vcc'}
        else:
            raise ValueError('unknown instr: ' + t)
    def states(self):
        if self.kind == 'label': return 0
        if self.kind == 'nop': return self.n
        return 1
    def __repr__(self): return self.text

class Asm:
    def __init__(self): self.L = []
    def __call__(self, text, tag=None):
        for line in text.split('\n'):
            if line.strip(): self.L.append(Inst(line, tag))
    def add(self, inst): self.L.append(inst)
    def extend(self, other): self.L.extend(other.L if isinstance(other, Asm) else other)
    def text(self): return '\n'.join(('' if i.kind == 'label' else '    ') + i.text for i in self.L) + '\n'

def _need(p, c):
    n = 0
    isv = lambda x: x.kind == 'valu'
    vregs = lambda S: {r for r in S if r[0] in 'va' and r != 'vcc'}
    sregs = lambda S: {r for r in S if r[0] == 's' or r == 'vcc'}
    if isv(p):
        d = vregs(p.defs)
        if c.kind == 'mfma' and d & c.uses: n = max(n, 2)
        if isv(c):
            if c.op.startswith('v_permlane') and d & c.uses: n = max(n, 2)
            if c.op.startswith(('v_readlane', 'v_readfirstlane')) and d & c.uses: n = max(n, 1)
            if c.dpp and d & c.uses: n = max(n, 2)
            if p.trans and not c.trans and d & c.uses: n = max(n, 1)
            if p.trans and c.trans and d & c.uses: n = max(n, 1)
            sd = sregs(p.defs)
            if sd & c.uses: n = max(n, 4 if c.op.startswith(('v_div_fmas', 'v_readlane', 'v_writelane')) else 2)
            if 'exec' in p.defs:
                if c.dpp: n = max(n, 5)
                if c.op.startswith(('v_readlane', 'v_readfirstlane', 'v_writelane', 'v_permlane')): n = max(n, 4)
        if p.trans and c.kind in ('ds_write', 'vstore', 'mfma') and d & c.uses: n = max(n, 2)
        if c.kind in ('vload', 'vstore', 'dma') and sregs(p.defs) & c.uses: n = max(n, 5)
        if c.kind in ('salu', 'branch', 'smem') and sregs(p.defs) & c.uses: n = max(n, 1 if c.kind == 'branch' else 4)
        if c.kind == 'mfma' and 'exec' in p.defs: n = max(n, 4)
    if p.kind == 'salu' and 'm0' in p.defs and c.kind == 'dma': n = max(n, 1)
    if p.kind == 'vstore' and ('x3' in p.op or 'x4' in p.op):
        if (c.defs & p.data): n = max(n, 2)
    if p.kind == 'ds_write' and ('b128' in p.op or 'b96' in p.op):
        pass
    if p.kind == 'mfma':
        P = p.passes
        big = {4: 8, 8: 12}[P]; part = {4: 6, 8: 10}[P]; war = {4: 3, 8: 7}[P]
        if c.kind == 'mfma':
            if p.defs & c.srcAB: n = max(n, big)
            if p.defs & c.srcC:
                if not (p.defs == c.srcC and p.passes == c.passes): n = max(n, part)
            elif p.defs & c.defs: n = max(n, part)
        elif c.kind in ('valu', 'vload', 'vstore', 'ds_read', 'ds_write', 'dma'):
            if p.defs & (c.uses | c.defs): n = max(n, big)
            if c.kind == 'valu' and p.srcC & c.defs: n = max(n, war)
    return n

def check_hazards(L, name='', wrap=None):
    seqs = [L]
    if wrap: seqs.append(L[wrap[0]:wrap[1]] * 2)
    bad = []
    for seq in seqs:
        for i, p in enumerate(seq):
            if p.kind not in ('valu', 'mfma', 'salu', 'vstore'): continue
            dist = 0
            for j in range(i + 1, len(seq)):
                c = seq[j]
                if c.kind == 'label': continue
                need = _need(p, c)
                if need > dist: bad.append((name, p.text, c.text, need, dist))
                dist += c.states()
                if dist >= 13: break
    return bad

def fix_hazards(L):
    out = []
    for c in L:
        if c.kind != 'label':
            dist = 0; add = 0
            for p in reversed(out):
                if p.kind == 'label': continue
                if p.kind in ('valu', 'mfma', 'salu', 'vstore'):
                    need = _need(p, c)
                    if need - dist > add: add = need - dist
                dist += p.states()
                if dist >= 13: break
            if add > 0: out.append(Inst(f's_nop {add-1}'))
        out.append(c)
    return out

def check_waits(L, name='', wrap=None, init_lgkm=None):
    seq = list(L)
    if wrap: seq = L[:wrap[1]] + L[wrap[0]:wrap[1]] + L[wrap[1]:]
    lg = []; vm = []
    bad = []
    for c in seq:
        if c.kind == 'label': continue
        if c.kind == 'wait':
            m = re.search(r'lgkmcnt\((\d+)\)', c.text)
            if m:
                n = int(m.group(1))
                if any(x.kind == 'smem' for x in lg) and n > 0:
                    keep = [x for x in lg if x.kind == 'smem']
                    rest = [x for x in lg if x.kind != 'smem']
                    lg = keep + rest
                else:
                    lg = lg[len(lg) - n:] if n < len(lg) and n > 0 else ([] if n == 0 else lg)
            m = re.search(r'vmcnt\((\d+)\)', c.text)
            if m:
                n = int(m.group(1))
                vm = vm[len(vm) - n:] if 0 < n < len(vm) else ([] if n == 0 else vm)
            continue
        touched = c.uses | c.defs
        for x in lg + vm:
            if x.defs & touched: bad.append((name, 'unwaited', x.text, c.text))
        if c.kind in ('ds_read', 'ds_write', 'smem'): lg.append(c)
        if c.kind in ('vload', 'vstore', 'dma', 'vmisc'): vm.append(c)
        if len([x for x in lg]) > 64: pass
    return bad

def auto_lgkm(L, wrap_prev=None):
    pre = list(wrap_prev) if wrap_prev else []
    seq = pre + list(L)
    isph = lambda x: x.kind == 'wait' and 'lgkmcnt(99)' in x.text
    ldsidx = []
    cnt = 0
    for x in seq:
        ldsidx.append(cnt)
        if x.kind in ('ds_read', 'ds_write'): cnt += 1
    res = {}
    n = len(seq)
    ext = seq + (list(L) if wrap_prev is not None else [])
    for i in range(len(pre), n):
        x = seq[i]
        if not isph(x): continue
        need = -1
        force = getattr(x, 'force', None)
        j = i + 1
        while j < len(ext) and not isph(ext[j]):
            c = ext[j]
            touched = c.uses | c.defs
            for k in range(i - 1, -1, -1):
                p = seq[k]
                if p.kind == 'ds_read' and p.defs & touched:
                    need = max(need, ldsidx[k]); break
            for k in range(i - 1, max(-1, i - 400), -1):
                p = seq[k]
                if p.kind == 'ds_read' and p.defs & touched: need = max(need, ldsidx[k])
            j += 1
        if force is not None:
            for k in range(i - 1, -1, -1):
                if force(seq[k]): need = max(need, ldsidx[k]); break
        outstanding_after = ldsidx[i] - (need + 1)
        res[i - len(pre)] = min(15, outstanding_after)
    out = []
    for i, x in enumerate(L):
        if i in res:
            t = x.text.replace('lgkmcnt(99)', f'lgkmcnt({res[i]})')
            out.append(Inst(t, x.tag))
        else: out.append(x)
    return out

KD = '''.p2align 6
.amdhsa_kernel {name}
  .amdhsa_next_free_vgpr {nv}
  .amdhsa_next_free_sgpr {ns}
  .amdhsa_accum_offset {acc}
  .amdhsa_group_segment_fixed_size 0
  .amdhsa_kernarg_size 120
  .amdhsa_user_sgpr_count 2
  .amdhsa_user_sgpr_kernarg_segment_ptr 1
  .amdhsa_system_sgpr_workgroup_id_x 1
{extra}.end_amdhsa_kernel
'''
def kernel_header(name):
    return f'.globl {name}\n.p2align 8\n.type {name},@function\n{name}:\n'
def srd(A, d, b, size, off=0):
    if off:
        A(f's_add_u32 s{d}, s{b}, {off}\ns_addc_u32 s{d+1}, s{b+1}, 0')
    else:
        A(f's_mov_b32 s{d}, s{b}\ns_mov_b32 s{d+1}, s{b+1}')
    A(f's_mov_b32 s{d+2}, {size}\ns_mov_b32 s{d+3}, 0x20000')

SCC_W = ('s_add', 's_sub', 's_cmp', 's_and', 's_or', 's_xor', 's_lshl', 's_lshr', 's_ashr', 's_min', 's_max', 's_not', 's_andn2', 's_bfe', 's_abs', 's_addk')
def check_scc(L):
    last = None
    for x in L:
        if x.kind == 'label': last = None; continue
        if x.op.startswith(('s_cselect', 's_cbranch_scc')):
            assert last is not None and last.op.startswith('s_cmp'), ('scc', last, x)
        if x.op.startswith(('s_addc', 's_subb')):
            assert last is not None and last.op in ('s_add_u32', 's_sub_u32'), ('scc', last, x)
        if x.op.startswith(SCC_W): last = x
```

```python
from asmlib import *
A_X, A_K, A_V, A_WQ, A_WO, B_X, B_W1, B_W2, B_W3, B_W4, IN_C, W_MOD, OUT, DBG, WS = [8 * i for i in range(15)]
WS_MOD = 0x0000000
WS_N1  = 0x0010000
WS_X2  = 0x0200000
WS_H   = 0x0400000
WS_NN  = 0x0600000
WS_H1  = 0x0800000
WS_X1  = 0x0A00000
WS_G   = 0x0C00000
WS_PART= 0x1400000
WS_STAMP = 0x3000000
WS_USED = 0x4000000
ROWB = 896
LOG2E = 1.4426950408889634
import struct
def f32(x): return '0x%08x' % struct.unpack('<I', struct.pack('<f', x))[0]

def rnd(A, d, x=None):
    A(f'v_cvt_pk_bf16_f32 {d}, 0, {x or d}')

class Sched:
    def __init__(self, mf, cap=2):
        self.mf = mf; self.cap = cap
        self.pin = [[] for _ in mf]
        self.streams = []
    def pinned(self, gap, text, cost=1, tag=None):
        i = Inst(text, tag); i.cost = cost
        self.pin[gap].append(i); return i
    def stream(self, items, prio=0):
        self.streams.append([prio, [list(x) for x in items]])
    def run(self):
        out = []
        self.streams.sort(key=lambda t: t[0])
        self.over = 0
        for g, m in enumerate(self.mf):
            out.append(Inst(m) if isinstance(m, str) else m)
            used = sum(p.cost for p in self.pin[g])
            flo = []
            progress = True
            while progress:
                progress = False
                for prio, it in self.streams:
                    if it and it[0][2] <= g and used + it[0][1] <= self.cap:
                        t = it.pop(0); flo.append(Inst(t[0])); used += t[1]; progress = True
                        break
            if used > self.cap: self.over += used - self.cap
            waits = [p for p in self.pin[g] if p.kind in ('wait', 'barrier', 'branch') or getattr(p, 'last', False)]
            rest = [p for p in self.pin[g] if p not in waits]
            out += rest + flo + waits
        left = [x for _, it in self.streams for x in it]
        return out, left
```

```python
from common import *
def ln16(A, x, n, t, eps_s, inv_s):
    A(f'v_add_f32 v{t}, v{x}, v{x+1}\nv_add_f32 v{t+1}, v{x+2}, v{x+3}')
    for i in range(4, n, 2): A(f'v_add_f32 v{t}, v{t}, v{x+i}\nv_add_f32 v{t+1}, v{t+1}, v{x+i+1}')
    A(f'v_add_f32 v{t}, v{t}, v{t+1}')
    for r in (8, 4, 2, 1): A(f'v_add_f32_dpp v{t}, v{t}, v{t} row_ror:{r} row_mask:0xf bank_mask:0xf')
    A(f'v_mul_f32 v{t}, {inv_s}, v{t}')
    A(f'v_sub_f32 v{t+3}, v{x}, v{t}\nv_mul_f32 v{t+1}, v{t+3}, v{t+3}')
    A(f'v_sub_f32 v{t+3}, v{x+1}, v{t}\nv_mul_f32 v{t+2}, v{t+3}, v{t+3}')
    for i in range(2, n):
        A(f'v_sub_f32 v{t+3}, v{x+i}, v{t}\nv_fmac_f32 v{t+1+(i&1)}, v{t+3}, v{t+3}')
    A(f'v_add_f32 v{t+1}, v{t+1}, v{t+2}')
    for r in (8, 4, 2, 1): A(f'v_add_f32_dpp v{t+1}, v{t+1}, v{t+1} row_ror:{r} row_mask:0xf bank_mask:0xf')
    A(f'v_mul_f32 v{t+1}, {inv_s}, v{t+1}')
    rnd(A, f'v{t}'); rnd(A, f'v{t+1}')
    A(f'v_add_f32 v{t+1}, {eps_s}, v{t+1}'); rnd(A, f'v{t+1}')
    A(f'v_sqrt_f32 v{t+1}, v{t+1}'); rnd(A, f'v{t+1}')
    A(f'v_rcp_f32 v{t+1}, v{t+1}')
    for i in range(n):
        A(f'v_sub_f32 v{x+i}, v{x+i}, v{t}'); rnd(A, f'v{x+i}')
    for i in range(n):
        A(f'v_mul_f32 v{x+i}, v{x+i}, v{t+1}'); rnd(A, f'v{x+i}')

def gen_ka(name='ka_kernel'):
    A = Asm()
    A('s_cmp_ge_u32 s2, 256\ns_cbranch_scc1 KA_done')
    A(f's_load_dwordx2 s[4:5], s[0:1], {WS}')
    A('s_cmp_lt_u32 s2, 42\ns_cbranch_scc1 KA_mod')
    A('s_cmp_lt_u32 s2, 170\ns_cbranch_scc1 KA_ln')
    A(f's_load_dwordx2 s[6:7], s[0:1], {A_WQ}')
    A('s_waitcnt lgkmcnt(0)')
    A('s_cmp_lt_u32 s2, 176\ns_cbranch_scc1 KA_guard')
    srd(A, 8, 6, 448 * 8192)
    A('s_and_b32 s12, s2, 7\ns_sub_u32 s13, s2, 176\ns_lshr_b32 s13, s13, 3')
    A('s_mul_i32 s13, s13, 45*8192\ns_lshl_b32 s12, s12, 10\ns_add_u32 s12, s12, s13')
    A('v_lshrrev_b32 v1, 4, v0\nv_lshlrev_b32 v1, 13, v1\nv_and_b32 v2, 15, v0\nv_lshl_add_u32 v1, v2, 6, v1')
    A('v_add_u32 v1, s12, v1')
    A('buffer_load_dword v4, v1, s[8:11], 0 offen')
    A('v_add_u32 v2, 16*8192, v1\nbuffer_load_dword v5, v2, s[8:11], 0 offen')
    A('v_add_u32 v2, 32*8192, v1\nbuffer_load_dword v6, v2, s[8:11], 0 offen')
    A('s_waitcnt vmcnt(0)\ns_endpgm')
    A('KA_guard:')
    A('s_cmp_lg_u32 s2, 170\ns_cbranch_scc1 KA_done')
    srd(A, 8, 4, WS_USED)
    A('v_lshlrev_b32 v1, 3, v0\nv_mov_b32 v2, 0\nv_mov_b32 v3, 0')
    A('v_cmp_gt_u32 vcc, 224, v0\ns_and_saveexec_b64 s[14:15], vcc\ns_cbranch_execz KA_done')
    A(f's_mov_b32 s12, {WS_H1}\nbuffer_store_dwordx2 v[2:3], v1, s[8:11], s12 offen')
    A(f's_mov_b32 s12, {WS_H1 + 2050*ROWB}\nbuffer_store_dwordx2 v[2:3], v1, s[8:11], s12 offen')
    A('s_endpgm')
    A('KA_ln:')
    A(f's_load_dwordx2 s[6:7], s[0:1], {A_X}')
    A('s_sub_u32 s12, s2, 42\ns_mul_i32 s12, s12, 16*896')
    A('v_lshrrev_b32 v1, 4, v0\nv_mul_u32_u24 v1, 896, v1\nv_and_b32 v2, 15, v0\nv_lshl_add_u32 v1, v2, 3, v1')
    A('s_waitcnt lgkmcnt(0)')
    srd(A, 8, 6, 2048 * ROWB)
    for t in range(7): A(f'buffer_load_dwordx2 v[{40+2*t}:{41+2*t}], v1, s[8:11], s12 offen offset:{128*t}')
    srd(A, 16, 4, WS_USED)
    A(f's_mov_b32 s20, {f32(1e-5)}\ns_mov_b32 s21, {f32(1.0/448)}\ns_add_u32 s13, s12, {WS_N1}')
    A('s_waitcnt vmcnt(0)')
    for i in range(14): A(f'v_lshlrev_b32 v{8+2*i}, 16, v{40+i}\nv_and_b32 v{9+2*i}, 0xffff0000, v{40+i}')
    ln16(A, 8, 28, 4, 's20', 's21')
    for i in range(14): A(f'v_cvt_pk_bf16_f32 v{40+i}, v{8+2*i}, v{9+2*i}')
    for t in range(7): A(f'buffer_store_dwordx2 v[{40+2*t}:{41+2*t}], v1, s[16:19], s13 offen offset:{128*t}')
    A('s_endpgm')
    A('KA_mod:')
    A(f's_load_dwordx2 s[6:7], s[0:1], {W_MOD}\ns_load_dwordx2 s[22:23], s[0:1], {IN_C}')
    A('v_lshrrev_b32 v1, 3, v0\nv_and_b32 v2, 7, v0')
    A('v_mul_u32_u24 v3, 5376, v1\nv_lshl_add_u32 v3, v2, 4, v3')
    A('v_lshlrev_b32 v4, 1, v1')
    A('s_lshl_b32 s12, s2, 7')
    A('s_waitcnt lgkmcnt(0)')
    srd(A, 8, 6, 448 * 5376); srd(A, 24, 22, 896)
    for i in range(14): A(f'buffer_load_ushort v{70+i}, v4, s[24:27], 0 offen offset:{64*i}')
    for i in range(14):
        A(f'buffer_load_dwordx4 v[{8+4*i}:{11+4*i}], v3, s[8:11], s12 offen')
        if i < 13: A(f's_add_u32 s12, s12, {32*5376}')
    srd(A, 16, 4, WS_USED)
    A(f's_mov_b32 s20, {f32(-LOG2E)}')
    A('s_waitcnt vmcnt(14)')
    for i in range(14):
        A(f'v_lshlrev_b32 v{70+i}, 16, v{70+i}\nv_mul_f32 v5, s20, v{70+i}\nv_exp_f32 v5, v5\nv_add_f32 v5, 1.0, v5\nv_rcp_f32 v5, v5\nv_mul_f32 v{70+i}, v{70+i}, v5')
        rnd(A, f'v{70+i}')
    for j in range(8): A(f'v_mov_b32 v{88+j}, 0')
    for i in range(14):
        A(f's_waitcnt vmcnt({13-i})')
        for j in range(4):
            A(f'v_lshlrev_b32 v5, 16, v{8+4*i+j}\nv_and_b32 v6, 0xffff0000, v{8+4*i+j}')
            A(f'v_fmac_f32 v{88+2*j}, v5, v{70+i}\nv_fmac_f32 v{89+2*j}, v6, v{70+i}')
    A('v_lshlrev_b32 v5, 8, v1\nv_lshl_add_u32 v5, v2, 5, v5')
    A('ds_write_b128 v5, v[88:91]\nds_write_b128 v5, v[92:95] offset:16')
    A('s_waitcnt lgkmcnt(0)\ns_barrier')
    A('v_cmp_gt_u32 vcc, 64, v0\ns_and_saveexec_b64 s[14:15], vcc\ns_cbranch_execz KA_done')
    A('v_lshlrev_b32 v5, 2, v0')
    for i in range(32): A(f'ds_read_b32 v{8+i}, v5 offset:{256*i}')
    A('s_waitcnt lgkmcnt(0)')
    for st in (16, 8, 4, 2, 1):
        for i in range(st): A(f'v_add_f32 v{8+i}, v{8+i}, v{8+i+st}')
    rnd(A, 'v8')
    A('v_add_f32 v9, 1.0, v8'); rnd(A, 'v9')
    A('s_sub_u32 s12, s2, 7\ns_cmp_lt_u32 s12, 7\ns_cselect_b32 s13, 1, 0')
    A('s_sub_u32 s12, s2, 28\ns_cmp_lt_u32 s12, 7\ns_cselect_b32 s13, 1, s13')
    A('s_cmp_eq_u32 s13, 0\ns_cbranch_scc1 KA_st\nv_mov_b32 v8, v9')
    A('KA_st:')
    A(f's_lshl_b32 s12, s2, 8\nbuffer_store_dword v8, v5, s[16:19], s12 offen')
    A('KA_done:\ns_endpgm')
    L = fix_hazards(A.L)
    bad = check_waits(L, 'ka')
    assert not bad, bad[:5]
    B = Asm(); B.L = L
    return dict(name=name, text=kernel_header(name) + B.text(), nv=96, ns=32, acc=96, grid=256, block=256, lds=8192)
```

```python
from common import *
KT, VT = 33280, 33792
L_K = 0; L_V = 2 * KT; L_P = L_V + 2 * VT
WSL = 8448
L_H = 12 * WSL
L_MOD = L_H + 57344
L_Q = 163840 - 128 * 528
OSL = 7424
L_O = 98304
def wo_slot(k): return [0, KT, L_V][k]
BIASK, BIASV = 3 * 528, 3 * 544
O_ = 0; S_ = 128; P_ = 192
vKA, vVO, vVP, vPW, vPR = 224, 225, 226, 227, 228
vDK, vDV = 230, 234
vT = 238
vNM = 250
vL = 246
vTID = 229
aQ = 0; aF = 128; aPP = 160; aNM = 176; aL = 192; aONE = 208
sK, sV, sW, sWS = 8, 12, 16, 20
sw, sg, srb, su = 24, 25, 26, 27
sK0, sK1, sV0, sV1 = 28, 29, 30, 31
sMK, sMV = 32, 33
sCNT, sC, sBIAS = 34, 35, 36
sKMAX = 37
sT = 40
MF = 'v_mfma_f32_16x16x32_bf16'
LW = 's_waitcnt lgkmcnt(99)'

def Oreg(dbl, c): return O_ + (dbl * 4 + c) * 4
def Sreg(b, kb, c): return S_ + b * 32 + (kb * 4 + c) * 4
def Preg(b, c): return P_ + b * 16 + c * 4
def Qreg(c, i): return aQ + (c * 8 + i) * 4
def Freg(f): return aF + (f % 8) * 4

def stamp(A, cfg, idx):
    if not cfg.get('stamp'): return
    A(f's_memrealtime s[60:61]\ns_memtime s[62:63]\ns_waitcnt lgkmcnt(0)\ns_mov_b32 s{64+2*idx}, s60\ns_mov_b32 s{65+2*idx}, s62')
def stamp_flush(A, cfg, n, srdreg, wreg):
    if not cfg.get('stamp'): return
    A(f's_lshl_b32 s60, s2, 10\ns_lshl_b32 s61, s{wreg}, 7\ns_add_u32 s60, s60, s61\ns_add_u32 s60, s60, {WS_STAMP + cfg["stamp"]*0x40000}')
    for i in range(n):
        A(f'v_mov_b32 v0, s{64+2*i}\nv_mov_b32 v1, s{65+2*i}\nbuffer_store_dwordx2 v[0:1], off, s[{srdreg}:{srdreg+3}], s60 offset:{8*i}\ns_nop 1')

def softmax_items(cfg, b):
    it = []
    for c in range(4):
        for kb in range(2):
            for h in range(2):
                for r in (2 * h, 2 * h + 1):
                    x = Sreg(b, kb, c) + r
                    if cfg['round_s']: it.append((f'v_cvt_pk_bf16_f32 v{x}, 0, v{x}', 1, c))
                    if cfg['fma']: it.append((f'v_fma_f32 v{x}, v{x}, s{sC}, v{vNM+c}', 1, c))
                    it.append((f'v_exp_f32 v{x}, v{x}', 2, c))
    out = []
    pend = []
    for c in range(4):
        for kb in range(2):
            for h in range(2):
                x = Sreg(b, kb, c) + 2 * h
                pre = []
                for r in (0, 1):
                    if cfg['round_s']: pre.append((f'v_cvt_pk_bf16_f32 v{x+r}, 0, v{x+r}', 1, c))
                for r in (0, 1):
                    if cfg['fma']: pre.append((f'v_fma_f32 v{x+r}, v{x+r}, s{sC}, v{vNM+c}', 1, c))
                out += pre
                out.append((f'v_exp_f32 v{x}, v{x}', 2, c))
                out += pend; pend = []
                out.append((f'v_exp_f32 v{x+1}, v{x+1}', 2, c))
                pend.append((f'v_cvt_pk_bf16_f32 v{Preg(b,c)+2*kb+h}, v{x}, v{x+1}', 1, c))
                if cfg['lsum'] == 'valu':
                    pend.append((f'v_add_f32 v{vL+c}, v{vL+c}, v{x}', 1, c))
                    pend.append((f'v_add_f32 v{vL+c}, v{vL+c}, v{x+1}', 1, c))
    out.append(('s_nop 0', 1, 3))
    out += pend
    return out

def kread(f, slot):
    return f'ds_read_b128 {a(Freg(f),4)}, v{vKA} offset:{slot*KT + (f&1)*512 + (f>>1)*32}'
def vread(f, slot):
    ad = vVO if f < 8 else vVP
    return [f'ds_read_b64_tr_b16 {a(Freg(f)+2*h,2)}, v{ad} offset:{slot*VT + h*8448 + (f&7)*32}' for h in range(2)]
def kdma(slot):
    it = []
    for half in range(2):
        it.append((f's_add_u32 m0, s{sMK}, {L_K + slot*KT + half*4160}', 1))
        for j in range(4): it.append((f'buffer_load_dwordx4 v{vDK+j}, s[{sK}:{sK+3}], s{sK0+half} offen offset:{1040*j} lds', 1))
    it.append((f's_add_u32 s{sK0}, s{sK0}, 0x8000', 1)); it.append((f's_min_u32 s{sK0}, s{sK0}, s{sKMAX}', 1)); it.append((f's_add_u32 s{sK1}, s{sK0}, 2048', 1))
    return it
def vdma(slot):
    it = []
    for half in range(2):
        it.append((f's_add_u32 m0, s{sMV}, {L_V + slot*VT + half*4224}', 1))
        for j in range(4): it.append((f'buffer_load_dwordx4 v{vDV+j}, s[{sV}:{sV+3}], s{sV0+half} offen offset:{1056*j} lds', 1))
    it.append((f's_add_u32 s{sV0}, s{sV0}, 0x8000', 1)); it.append((f's_add_u32 s{sV1}, s{sV1}, 0x8000', 1))
    return it
def wodma(k, m0base=None):
    it = [(f's_mov_b64 exec, s[{sT+4}:{sT+5}]', 1)]
    for half in range(2):
        it.append((f's_add_u32 m0, s{sMK}, {wo_slot(k) + half*4*928}' if m0base is None else f's_add_u32 m0, s{m0base}, {half*4*928}', 1))
        for j in range(4): it.append((f'buffer_load_dwordx4 v{vDK+j}, s[{sW}:{sW+3}], s{sK0+half} offen offset:{928*j} lds', 1))
    it.append(('s_mov_b64 exec, -1', 1))
    it.append((f's_add_u32 s{sK0}, s{sK0}, {32*896}', 1)); it.append((f's_add_u32 s{sK1}, s{sK1}, {32*896}', 1))
    return it
LA = 4

def qk_mfmas(cfg, b, first_c=None):
    mf = []
    for f in range(16):
        ks, kb = f >> 1, f & 1
        for c in range(4):
            d = Sreg(b, kb, c)
            if ks == 0: C = '0' if (cfg['fma'] or first_c == 0) else a(aNM + 4 * c, 4)
            else: C = v(d, 4)
            mf.append(f'{MF} {v(d,4)}, {a(Freg(f),4)}, {a(Qreg(c,ks),4)}, {C}')
    return mf
def pv_mfmas(cfg, b):
    mf = []
    if cfg['lsum'] == 'mfma':
        for c in range(4): mf.append(f'{MF} {a(aL+4*c,4)}, {a(aONE,4)}, {v(Preg(b,c),4)}, {a(aL+4*c,4)}')
    for f in range(16):
        kg, dbl = f >> 3, f & 7
        for c in range(4):
            B = v(Preg(b, c), 4) if kg == 0 else a(aPP + 4 * c, 4)
            mf.append(f'{MF} {v(Oreg(dbl,c),4)}, {a(Freg(f),4)}, {B}, {v(Oreg(dbl,c),4)}')
    return mf

def split_sm(cfg, items):
    tot = sum(x[1] for x in items)
    acc = 0
    for i, x in enumerate(items):
        if acc >= tot * cfg['smsplit'] and x[0].startswith(('v_exp', 'v_fma', 'v_cvt_pk_bf16_f32 v1')): return items[:i], items[i:]
        acc += x[1]
    return items, []

def phase_qk(cfg, T, dma, tail=None):
    b = (T + 1) & 1; pb = T & 1
    mf = qk_mfmas(cfg, b)
    sc = Sched(mf)
    for f in range(16):
        g0 = 4 * f
        nf = f + LA
        if nf < 16: sc.pinned(g0, kread(nf, b))
        else:
            for t in vread(nf - 16, pb): sc.pinned(g0, t)
        if f % 2 == 1 and f < 15: sc.pinned(g0 + 3, LW)
    _, second = split_sm(cfg, softmax_items(cfg, pb))
    sm = []
    for i, x in enumerate(second):
        sm.append((x[0], x[1], 0))
        last_of_c = x[0].startswith(f'v_cvt_pk_bf16_f32 v{Preg(pb, x[2])+3},')
    allit = softmax_items(cfg, pb)
    sm2 = []
    done_first = [c for c in range(4) if not any(x[0].startswith(f'v_cvt_pk_bf16_f32 v{Preg(pb,c)+k},') for x in second for k in range(4))]
    for c in done_first: sm2.append((f'ds_write_b128 v{vPW}, {v(Preg(pb,c),4)} offset:{1024*c}', 1, 1))
    for x in second:
        sm2.append((x[0], x[1], 0))
        if x[0].startswith(f'v_cvt_pk_bf16_f32 v{Preg(pb,x[2])+3},'):
            sm2.append((f'ds_write_b128 v{vPW}, {v(Preg(pb,x[2]),4)} offset:{1024*x[2]}', 1, 0))
    sc.stream(sm2, prio=0)
    n = len(dma)
    sc.stream([(t, cst, min(60, int(cfg['dma0'] + i * cfg['dmastep']))) for i, (t, cst) in enumerate(dma)], prio=1)
    w = sc.pinned(63, 's_waitcnt vmcnt(8) lgkmcnt(99)' if dma else LW)
    w.force = lambda x: x.kind == 'ds_write'
    sc.pinned(63, 's_barrier')
    out, left = sc.run()
    assert not left, left
    return out
def phase_pv(cfg, T, dma, last=False, loopend=None, vm=8):
    pb = T & 1; b = (T + 1) & 1
    mf = pv_mfmas(cfg, pb)
    off = 4 if cfg['lsum'] == 'mfma' else 0
    sc = Sched(mf)
    for c in range(4): sc.pinned(c if off else 1 + c, f'ds_read_b128 {a(aPP+4*c,4)}, v{vPR} offset:{1024*c}')
    if off: sc.pinned(3, LW)
    for f in range(16):
        g0 = off + 4 * f
        nf = f + LA
        if nf < 16:
            for t in vread(nf, pb): sc.pinned(g0, t)
        elif not last: sc.pinned(g0, kread(nf - 16, pb))
        if f % 2 == 1 and f < 15: sc.pinned(g0 + 3, LW)
    if not last:
        first, _ = split_sm(cfg, softmax_items(cfg, b))
        sc.stream([(x[0], x[1], 5) for x in first], prio=0)
    sc.stream([(t, cst, min(off + 60, int(cfg['dma0'] + i * cfg['dmastep']))) for i, (t, cst) in enumerate(dma)], prio=1)
    e = len(mf) - 1
    if loopend:
        sc.pinned(e - 1, f's_sub_u32 s{sCNT}, s{sCNT}, 1');
        p = sc.pinned(e - 1, f's_cmp_lg_u32 s{sCNT}, 0'); p.last = True
    if not last:
        sc.pinned(e, f's_waitcnt vmcnt({vm}) lgkmcnt(99)')
        sc.pinned(e, 's_barrier')
    if loopend: sc.pinned(e, f's_cbranch_scc1 {loopend}')
    out, left = sc.run()
    assert not left, left
    return out

def gen_kb(cfg, name='kb_kernel'):
    A = Asm()
    A('s_cmp_ge_u32 s2, 256\ns_cbranch_scc1 KB_done')
    A(f's_load_dwordx4 s[44:47], s[0:1], {A_K}\ns_load_dwordx4 s[48:51], s[0:1], {A_WQ}\ns_load_dwordx2 s[52:53], s[0:1], {WS}')
    A(f'v_mov_b32 v{vTID}, v0\nv_lshrrev_b32 v1, 6, v0\nv_and_b32 v2, 63, v0')
    A(f'v_readfirstlane_b32 s{sw}, v1')
    A(f's_and_b32 s{sg}, s2, 7\ns_lshr_b32 s{srb}, s2, 3\ns_and_b32 s{su}, s{sw}, 1')
    A('v_and_b32 v3, 15, v2\nv_lshrrev_b32 v4, 4, v2')
    A('s_waitcnt lgkmcnt(0)')
    srd(A, sWS, 52, WS_USED)
    srd(A, sW, 48, 448 * 8192)
    stamp(A, cfg, 0)
    A(f's_lshl_b32 s{sT}, s{sw}, 10\ns_add_u32 m0, s{sT}, {L_MOD}\nv_lshlrev_b32 v5, 4, v2')
    A(f'buffer_load_dwordx4 v5, s[{sWS}:{sWS+3}], s{sT} offen lds')
    A(f's_lshl_b32 s{sT}, s{srb}, 6\ns_lshl_b32 s{sT+1}, s{sw}, 4\ns_add_u32 s{sT}, s{sT}, s{sT+1}\ns_mul_i32 s{sT}, s{sT}, 896\ns_add_u32 s{sT}, s{sT}, {WS_N1}')
    A('v_mul_u32_u24 v6, 896, v3\nv_lshl_add_u32 v6, v4, 4, v6')
    for st in range(14): A(f'buffer_load_dwordx4 {v(128+4*st,4)}, v6, s[{sWS}:{sWS+3}], s{sT} offen offset:{64*st}')
    A('v_and_b32 v7, 1, v4\nv_lshlrev_b32 v7, 15, v7\nv_lshrrev_b32 v8, 1, v4\nv_lshl_add_u32 v7, v8, 17, v7\nv_lshl_add_u32 v7, v3, 4, v7')
    A(f'v_mov_b32 v{vDK}, v7')
    for j in range(1, 4): A(f'v_add_u32 v{vDK+j}, {7136*j}, v7')
    A(f's_lshl_b32 s{sK0}, s{sg}, 10\ns_lshl_b32 s{sT}, s{sw}, 8\ns_add_u32 s{sK0}, s{sK0}, s{sT}\ns_add_u32 s{sK1}, s{sK0}, 65536')
    A(f's_mul_i32 s{sMK}, s{sw}, {3*WSL}')
    def wqdma(m0s, add):
        it = []
        for half in range(2):
            it.append((f's_add_u32 m0, s{m0s}, {add + half*4224}', 1))
            for j in range(4): it.append((f'buffer_load_dwordx4 v{vDK+j}, s[{sW}:{sW+3}], s{sK0+half} offen offset:{1056*j} lds', 1))
        it.append((f's_add_u32 s{sK0}, s{sK0}, {32*8192}', 1)); it.append((f's_add_u32 s{sK1}, s{sK1}, {32*8192}', 1))
        return it
    for k in range(3):
        for t, _ in wqdma(sMK, k * WSL): A(t)
    A(f's_lshl_b32 s{sT}, s{sg}, 20')
    A(f's_add_u32 s{sK}, s44, s{sT}\ns_addc_u32 s{sK+1}, s45, 0\ns_sub_u32 s{sK}, s{sK}, {BIASK}\ns_subb_u32 s{sK+1}, s{sK+1}, 0\ns_mov_b32 s{sK+2}, {(1<<20)+BIASK}\ns_mov_b32 s{sK+3}, 0x20000')
    A(f's_add_u32 s{sV}, s46, s{sT}\ns_addc_u32 s{sV+1}, s47, 0\ns_sub_u32 s{sV}, s{sV}, {BIASV}\ns_subb_u32 s{sV+1}, s{sV+1}, 0\ns_mov_b32 s{sV+2}, {(1<<20)+BIASV}\ns_mov_b32 s{sV+3}, 0x20000')
    A(f's_mul_i32 s{sT}, s{su}, {16*1040}\nv_mul_u32_u24 v9, 1040, v3\nv_and_b32 v10, 1, v4\nv_lshlrev_b32 v10, 8, v10\nv_lshl_add_u32 v10, v8, 4, v10')
    A(f'v_add3_u32 v{vKA}, v9, v10, s{sT}')
    A(f'v_mov_b32 v{vT+4}, v10')
    A('v_and_b32 v10, 1, v4\nv_bfe_u32 v11, v2, 2, 2\nv_lshl_add_u32 v10, v10, 2, v11\nv_mul_u32_u24 v12, 1056, v10')
    A('v_and_b32 v11, 3, v2\nv_lshlrev_b32 v11, 3, v11')
    A(f'v_lshl_add_u32 v13, v8, 9, v11\nv_add_u32 v13, v13, v12')
    A(f's_mul_i32 s{sT}, s{su}, {256+16*1056}\ns_add_u32 s{sT}, s{sT}, {L_V}\nv_add_u32 v{vVO}, s{sT}, v13')
    A(f's_mul_i32 s{sT}, s{su}, {16*1056-256}\ns_sub_u32 s{sT}, {L_V+16*1056}, s{sT}\nv_add_u32 v{vVP}, s{sT}, v13')
    A(f'v_add_u32 v{vT}, s{sMK}, v13')
    A(f'v_mul_u32_u24 v12, 928, v10\nv_mul_u32_u24 v14, 224, v8\nv_add3_u32 v12, v12, v14, v11\ns_mul_i32 s{sT}, s{sw}, {OSL}\nv_add_u32 v254, s{sT}, v12')
    A(f's_lshl_b32 s{sT}, s{sw}, 12\ns_add_u32 s{sT}, s{sT}, {L_P}\nv_add_u32 v{vPW}, s{sT}, v5\ns_xor_b32 s{sT}, s{sT}, 4096\nv_add_u32 v{vPR}, s{sT}, v5')
    A('v_lshrrev_b32 v14, 5, v2\nv_and_b32 v15, 31, v2\nv_lshlrev_b32 v15, 4, v15')
    A(f'v_lshl_add_u32 v16, v14, 12, v15')
    for j in range(4): A(f'v_add_u32 v{vDV+j}, {BIASV-544*j}, v16')
    A(f'v_lshl_add_u32 v{vT+6}, v14, 13, v15')
    A(f's_lshl_b32 s{sV0}, s{sw}, 13\ns_add_u32 s{sV1}, s{sV0}, 2048\ns_mul_i32 s{sMV}, s{sw}, {8*1056}')
    A(f'v_add_u32 v{vT+1}, {L_H}, v5')
    A(f's_mul_i32 s{sT}, s{sw}, {14*1024}\nv_add_u32 v{vT+2}, s{sT}, v{vT+1}')
    A(f'v_lshlrev_b32 v{vT+3}, 5, v4\nv_add_u32 v{vT+3}, {L_MOD}, v{vT+3}')
    A(f's_mov_b32 s{sC}, {f32(LOG2E/16)}\ns_mov_b32 s{sBIAS}, {f32(cfg["bias"])}')
    A(f'v_mov_b32 v{vT+7}, v3\nv_mov_b32 v{vT+8}, v4')
    for i in range(128): A(f'v_mov_b32 v{i}, 0')
    A('s_waitcnt vmcnt(38)\ns_barrier')
    stamp(A, cfg, 1)
    tm = 184
    def modreads(st, buf):
        b0 = tm + buf * 16
        return [f'ds_read_b128 {v(b0,4)}, v{vT+3} offset:{1792+128*st}', f'ds_read_b128 {v(b0+4,4)}, v{vT+3} offset:{1792+128*st+16}',
                f'ds_read_b128 {v(b0+8,4)}, v{vT+3} offset:{128*st}', f'ds_read_b128 {v(b0+12,4)}, v{vT+3} offset:{128*st+16}']
    for t in modreads(0, 0): A(t)
    extra = 0
    for st in range(14):
        if st < 13:
            for t in modreads(st + 1, (st + 1) & 1): A(t)
        A(f's_waitcnt vmcnt({24+13-st+extra}) lgkmcnt({4 if st < 13 else 0})') if st == 0 or st == 13 else A(f's_waitcnt vmcnt({24+13-st+extra}) lgkmcnt(4)')
        b0 = tm + (st & 1) * 16; x = 216
        for q in range(4):
            r = 128 + 4 * st + q
            A(f'v_lshlrev_b32 v{x}, 16, v{r}\nv_and_b32 v{x+1}, 0xffff0000, v{r}')
            if cfg['mimic_hm']:
                A(f'v_mul_f32 v{x}, v{x}, v{b0+2*q}\nv_mul_f32 v{x+1}, v{x+1}, v{b0+2*q+1}')
                rnd(A, f'v{x}'); rnd(A, f'v{x+1}')
                A(f'v_add_f32 v{x}, v{x}, v{b0+8+2*q}\nv_add_f32 v{x+1}, v{x+1}, v{b0+9+2*q}')
            else:
                A(f'v_fma_f32 v{x}, v{x}, v{b0+2*q}, v{b0+8+2*q}\nv_fma_f32 v{x+1}, v{x+1}, v{b0+2*q+1}, v{b0+9+2*q}')
            A(f'v_cvt_pk_bf16_f32 v{r}, v{x}, v{x+1}')
        A(f'ds_write_b128 v{vT+2}, {v(128+4*st,4)} offset:{1024*st}')
    A(f's_waitcnt vmcnt({16+extra}) lgkmcnt(0)\ns_barrier')
    stamp(A, cfg, 2)
    vCUR, vNXT, vH = vT + 9, vT + 10, vT + 1
    HB = lambda buf, c: 128 + buf * 16 + c * 4
    WF = lambda f: aF + (f % 8) * 4
    def wread(f, ad): return [f'ds_read_b64_tr_b16 {a(WF(f)+2*h,2)}, v{ad} offset:{(f&7)*32 + h*256}' for h in range(2)]
    sSL, sSLN, sDM = sT, sT + 1, sT + 2
    A(f'v_mov_b32 v{vCUR}, v{vT}\nv_add_u32 v{vNXT}, {WSL}, v{vT}\ns_mov_b32 s{sSL}, {WSL}\ns_mov_b32 s{sDM}, s{sMK}')
    for c in range(4): A(f'ds_read_b128 {v(HB(0,c),4)}, v{vH} offset:{c*14*1024}')
    for f in range(LA):
        for t in wread(f, vCUR): A(t)
    A(f'v_add_u32 v{vH}, 1024, v{vH}')
    def qstep(buf, dma, lastq=False, loop=None, vm=8):
        mf = [f'{MF} {v(Oreg(f,c),4)}, {a(WF(f),4)}, {v(HB(buf,c),4)}, {v(Oreg(f,c),4)}' for f in range(8) for c in range(4)]
        sc = Sched(mf)
        for f in range(8):
            nf = f + LA
            if nf < 8:
                for t in wread(nf, vCUR): sc.pinned(4 * f, t)
            elif not lastq:
                for t in wread(nf, vNXT): sc.pinned(4 * f, t)
            if f % 2 == 1 and (f < 7 or not lastq): sc.pinned(4 * f + 3, LW)
        if not lastq:
            sc.pinned(15, f's_waitcnt vmcnt({vm})')
            for c in range(4): sc.pinned(17 + 4 * (c // 2) + (c & 1), f'ds_read_b128 {v(HB(buf^1,c),4)}, v{vH} offset:{c*14*1024}')
            upd = [(f'v_mov_b32 v{vCUR}, v{vNXT}', 1, 29), (f's_add_u32 s{sSL}, s{sSL}, {WSL}', 1, 29), (f's_cmp_eq_u32 s{sSL}, {3*WSL}', 1, 29),
                   (f's_cselect_b32 s{sSL}, 0, s{sSL}', 1, 29), (f'v_add_u32 v{vNXT}, s{sSL}, v{vT}', 1, 29), (f'v_add_u32 v{vH}, 1024, v{vH}', 1, 29)]
        else: upd = []
        sc.stream([(t, cs, 1) for t, cs in dma], prio=1)
        out, left = sc.run()
        assert not left, left
        if dma:
            k = [i for i, x in enumerate(out) if x.kind == 'wait' and 'vmcnt' in x.text][0]
            assert sum(x.kind == 'dma' for x in out[:k]) == 8
        out += [Inst(x[0]) for x in upd]
        return out
    dmaq = lambda: wqdma(sDM, 0) + [(f's_add_u32 s{sDM}, s{sDM}, {WSL}', 1), (f's_sub_u32 s{sT+3}, s{sDM}, s{sMK}', 1), (f's_cmp_eq_u32 s{sT+3}, {3*WSL}', 1), (f's_cselect_b32 s{sDM}, s{sMK}, s{sDM}', 1)]
    pre = list(A.L)
    A(LW)
    A.extend(qstep(0, [], vm=8 + extra))
    A(f's_mov_b32 s{sCNT}, 5')
    i0 = len(A.L)
    A('KB_qloop:')
    A.extend(qstep(1, dmaq())); A.extend(qstep(0, dmaq()))
    A(f's_sub_u32 s{sCNT}, s{sCNT}, 1\ns_cmp_lg_u32 s{sCNT}, 0\ns_cbranch_scc1 KB_qloop')
    i1 = len(A.L)
    A.extend(qstep(1, dmaq()))
    A.extend(qstep(0, [], vm=0))
    for j in range(4): A(f'v_add_u32 v{vDK+j}, {BIASK-528*j}, v{vT+6}')
    A(f's_and_b32 s{sT+3}, s{sw}, 1\ns_lshl_b32 s{sT+3}, s{sT+3}, 12\ns_lshr_b32 s{sK0}, s{sw}, 1\ns_lshl_b32 s{sK0}, s{sK0}, 14\ns_add_u32 s{sK0}, s{sK0}, s{sT+3}\ns_add_u32 s{sK1}, s{sK0}, 2048')
    A(f's_add_u32 s{sKMAX}, s{sK0}, {31*0x8000}\ns_mul_i32 s{sMK}, s{sw}, {8*1040}')
    A.extend(qstep(1, [], lastq=True))
    qwrap = (i0, i1)
    A('s_barrier')
    stamp(A, cfg, 3)
    for t, _ in kdma(0) + kdma(1): A(t)
    A(f's_lshr_b32 s{sT}, s{sw}, 1\ns_mul_i32 s{sT}, s{sT}, {64*528}\ns_add_u32 s{sT}, s{sT}, {L_Q}')
    A(f'v_mul_u32_u24 v{vT}, 528, v{vT+7}\nv_add_u32 v{vT}, s{sT}, v{vT}')
    A(f'v_add_u32 v{vT+1}, v{vT}, v{vT+4}')
    A(f's_lshl_b32 s{sT}, s{su}, 8\nv_lshl_add_u32 v{vT+2}, v{vT+8}, 3, v{vT}\nv_add_u32 v{vT+2}, s{sT}, v{vT+2}')
    for dbl in range(8):
        for c in range(4):
            o = Oreg(dbl, c); t = 128 + ((dbl * 4 + c) % 8) * 2
            if not cfg['fma']:
                for r in range(4): A(f'v_mul_f32 v{o+r}, s{sC}, v{o+r}')
            A(f'v_cvt_pk_bf16_f32 v{t}, v{o}, v{o+1}\nv_cvt_pk_bf16_f32 v{t+1}, v{o+2}, v{o+3}')
            A(f'ds_write_b64 v{vT+2}, {v(t,2)} offset:{c*8448 + 32*dbl}')
    A(f's_waitcnt vmcnt({8}) lgkmcnt(0)\ns_barrier')
    for ks in range(8):
        for c in range(4): A(f'ds_read_b128 {a(Qreg(c,ks),4)}, v{vT+1} offset:{c*8448 + 32*ks}')
    for i in range(128): A(f'v_mov_b32 v{i}, 0')
    for i in range(16): A(f'v_accvgpr_write_b32 a{aL+i}, 0')
    A(f'v_mov_b32 v{vT}, 0x3f803f80')
    for i in range(4): A(f'v_accvgpr_write_b32 a{aONE+i}, v{vT}')
    for c in range(4): A(f'v_mov_b32 v{vL+c}, 0')
    A('s_waitcnt lgkmcnt(0)')
    for f in range(LA): A(kread(f, 0))
    A('s_barrier')
    for t, _ in vdma(0): A(t)
    stamp(A, cfg, 4)
    mf = qk_mfmas(cfg, 0, first_c=0)
    sc = Sched(mf)
    for f in range(16):
        if f + LA < 16: sc.pinned(4 * f, kread(f + LA, 0))
        if f % 2 == 1 and f < 15: sc.pinned(4 * f + 3, LW)
    A(LW)
    out, _ = sc.run(); A.extend(out)
    A('s_nop 7')
    M = vT
    M = 240; T2 = 244
    for c in range(4):
        x, y = Sreg(0, 0, c), Sreg(0, 1, c)
        A(f'v_max3_f32 v{M+c}, v{x}, v{x+1}, v{x+2}\nv_max3_f32 v{M+c}, v{M+c}, v{x+3}, v{y}\nv_max3_f32 v{M+c}, v{M+c}, v{y+1}, v{y+2}\nv_max_f32 v{M+c}, v{M+c}, v{y+3}')
    for sw_ in ('16', '32'):
        for c in range(4):
            A(f'v_mov_b32 v{T2}, v{M+c}\nv_permlane{sw_}_swap_b32 v{M+c}, v{T2}\nv_max_f32 v{M+c}, v{M+c}, v{T2}')
    A(f'ds_write_b128 v{vPW}, {v(M,4)}')
    A(f's_waitcnt vmcnt({8+extra}) lgkmcnt(0)\ns_barrier')
    A(f'ds_read_b128 {v(192,4)}, v{vPR}')
    for t, _ in kdma(0): A(t)
    A('s_waitcnt lgkmcnt(0)')
    for c in range(4):
        A(f'v_max_f32 v{M+c}, v{M+c}, v{192+c}')
        if cfg['fma']:
            A(f'v_fma_f32 v{vNM+c}, -v{M+c}, s{sC}, -s{sBIAS}') if False else A(f'v_mul_f32 v{M+c}, s{sC}, v{M+c}\nv_add_f32 v{M+c}, s{sBIAS}, v{M+c}\nv_sub_f32 v{vNM+c}, 0, v{M+c}')
        else:
            A(f'v_add_f32 v{M+c}, s{sBIAS}, v{M+c}\nv_sub_f32 v{M+c}, 0, v{M+c}')
            for r in range(4): A(f'v_accvgpr_write_b32 a{aNM+4*c+r}, v{M+c}')
            for kb in range(2):
                for r in range(4): A(f'v_add_f32 v{Sreg(0,kb,c)+r}, v{Sreg(0,kb,c)+r}, v{M+c}')
    first, _ = split_sm(cfg, softmax_items(cfg, 0))
    for f in range(LA): A(kread(f, 1))
    for x in first: A(x[0])
    A(f's_waitcnt vmcnt(8) lgkmcnt(99)\ns_barrier')
    stamp(A, cfg, 5)
    A(f's_mov_b32 s{sCNT}, 15')
    m0 = len(A.L)
    A('KB_loop:')
    A.extend(phase_qk(cfg, 0, vdma(1))); A.extend(phase_pv(cfg, 0, kdma(1)))
    A.extend(phase_qk(cfg, 1, vdma(0))); A.extend(phase_pv(cfg, 1, kdma(0), loopend='KB_loop'))
    m1 = len(A.L)
    A.extend(phase_qk(cfg, 30, vdma(1)))
    A(f'v_and_b32 v{vT}, 63, v{vTID}\nv_mul_u32_u24 v{vT+1}, 4682, v{vT}\nv_lshrrev_b32 v{vT+1}, 16, v{vT+1}')
    A(f'v_mul_u32_u24 v{vT+2}, 14, v{vT+1}\nv_sub_u32 v{vT+2}, v{vT}, v{vT+2}\nv_lshlrev_b32 v{vT+2}, 4, v{vT+2}\nv_mul_u32_u24 v{vT+1}, {8*896}, v{vT+1}\nv_add_u32 v{vT+1}, v{vT+1}, v{vT+2}')
    for j in range(4): A(f'v_add_u32 v{vDK+j}, {96-32*j}, v{vT+1}')
    A(f's_sub_u32 s{sW}, s50, 96\ns_subb_u32 s{sW+1}, s51, 0\ns_mov_b32 s{sW+2}, {4096*896+96}\ns_mov_b32 s{sW+3}, 0x20000')
    A(f's_mul_i32 s{sK0}, s{sg}, {512*896}\ns_mul_i32 s{sT}, s{sw}, 224\ns_add_u32 s{sK0}, s{sK0}, s{sT}\ns_add_u32 s{sK1}, s{sK0}, {4*896}\ns_mul_i32 s{sMK}, s{sw}, {OSL}')
    A(f's_mov_b32 s{sT+4}, -1\ns_mov_b32 s{sT+5}, 0x00ffffff')
    fix_from = len(A.L)
    A.extend(phase_pv(cfg, 30, [], vm=0))
    for k in range(3):
        for t, _ in wodma(k): A(t)
    _, second = split_sm(cfg, softmax_items(cfg, 1))
    A('s_nop 3')
    for x in second: A(x[0])
    for c in range(4): A(f'ds_write_b128 v{vPW}, {v(Preg(1,c),4)} offset:{1024*c}')
    for f in range(LA):
        for t in vread(f, 1): A(t)
    w = Inst(LW); w.force = lambda x: x.kind == 'ds_write'; A.add(w)
    A('s_barrier')
    A.extend(phase_pv(cfg, 31, [], last=True))
    stamp(A, cfg, 6)
    A('s_nop 7')
    if cfg['lsum'] == 'mfma':
        for c in range(4): A(f'v_accvgpr_read_b32 v{M+c}, a{aL+4*c}')
    else:
        for c in range(4): A(f'v_mov_b32 v{M+c}, v{vL+c}')
        for sw_ in ('16', '32'):
            for c in range(4):
                A(f'v_mov_b32 v{T2}, v{M+c}\nv_permlane{sw_}_swap_b32 v{M+c}, v{T2}\nv_add_f32 v{M+c}, v{M+c}, v{T2}')
    LX = L_V + 4 * OSL
    A(f'v_add_u32 v{T2}, {LX - L_P}, v{vPW}\nv_add_u32 v{T2+1}, {LX - L_P}, v{vPR}')
    A(f's_mul_i32 s{sT}, s{sw}, 3072\nv_subrev_u32 v{T2}, s{sT}, v{T2}\ns_xor_b32 s{sT}, s{sw}, 1\ns_mul_i32 s{sT}, s{sT}, 3072\nv_subrev_u32 v{T2+1}, s{sT}, v{T2+1}')
    A(f'ds_write_b128 v{T2}, {v(M,4)}\ns_waitcnt lgkmcnt(0)\ns_barrier')
    A(f'ds_read_b128 {v(192,4)}, v{T2+1}')
    A(f'v_and_b32 v{vT}, 63, v{vTID}\nv_lshlrev_b32 v{vT}, 4, v{vT}\nv_add_u32 v{vT}, {L_O}, v{vT}')
    A(f's_lshl_b32 s{sT}, s{sw}, 14\nv_add_u32 v{vT+1}, s{sT}, v{vT}')
    A('s_waitcnt lgkmcnt(0)\ns_barrier')
    for c in range(4): A(f'v_add_f32 v{M+c}, v{M+c}, v{192+c}\nv_rcp_f32 v{M+c}, v{M+c}')
    for i in range(4):
        for c in range(4):
            t = 128 + ((i * 4 + c) % 4) * 4
            for hh in range(2):
                o = Oreg(2 * i + hh, c)
                for r in range(4): A(f'v_mul_f32 v{o+r}, v{o+r}, v{M+c}')
                A(f'v_cvt_pk_bf16_f32 v{t+2*hh}, v{o}, v{o+1}\nv_cvt_pk_bf16_f32 v{t+2*hh+1}, v{o+2}, v{o+3}')
            A(f'ds_write_b128 v{vT+1}, {v(t,4)} offset:{(i*4+c)*1024}')
    for i in range(112): A(f'v_mov_b32 v{i}, 0')
    A(f's_waitcnt vmcnt({16+extra}) lgkmcnt(0)\ns_barrier')
    stamp(A, cfg, 7)
    vWB = 254
    vCUR, vNXT, vOA = vT + 2, vT + 3, vT
    OB = lambda buf, c: 128 + buf * 16 + c * 4
    AC = lambda nb, c: (nb * 4 + c) * 4
    fctr = [0]
    def oread(fi, nb, ad): return [f'ds_read_b64_tr_b16 {a(aF+(fi%7)*4+2*h,2)}, v{ad} offset:{nb*32 + h*448}' for h in range(2)]
    LAO = 3
    sS0, sS1, sS2 = sT, sT + 1, sT + 2
    A(f's_mov_b32 s{sS0}, 0\ns_mov_b32 s{sS1}, {KT}\ns_mov_b32 s{sS2}, {L_V}')
    A(f'v_mov_b32 v{vCUR}, v{vWB}\nv_add_u32 v{vNXT}, {KT}, v{vWB}')
    for c in range(4): A(f'ds_read_b128 {v(OB(0,c),4)}, v{vOA} offset:{c*1024}')
    for f in range(LAO):
        for t in oread(f, f, vCUR): A(t)
    A(f'v_add_u32 v{vOA}, 4096, v{vOA}')
    def ostep(buf, dma, lasto=False, vm=8):
        mf = [f'{MF} {v(AC(f,c),4)}, {a(aF+f*4,4)}, {v(OB(buf,c),4)}, {v(AC(f,c),4)}' for f in range(7) for c in range(4)]
        sc = Sched(mf)
        for f in range(7):
            nf = f + LAO
            if nf < 7:
                for t in oread(nf, nf, vCUR): sc.pinned(4 * f, t)
            elif not lasto:
                for t in oread(nf, nf - 7, vNXT): sc.pinned(4 * f, t)
            if (f % 2 == 0 and f < 6) or (f == 6 and not lasto): sc.pinned(4 * f + 3, LW)
        pre = []
        if dma:
            pass
        if not lasto:
            sc.pinned(15, f's_waitcnt vmcnt({vm})')
            for c in range(4): sc.pinned(17 + 4 * (c // 2) + (c & 1), f'ds_read_b128 {v(OB(buf^1,c),4)}, v{vOA} offset:{c*1024}')
        out, left = sc.run()
        if dma:
            blk = [Inst(f's_add_u32 s{sT+3}, s{sMK}, s{sS2}')] + [Inst(t) for t, _ in wodma(0, m0base=sT + 3)] + [Inst('s_nop 1')]
            idx = [i for i, x in enumerate(out) if x.kind == 'mfma'][2]
            out = out[:idx] + blk + out[idx:]
        if not lasto:
            out += [Inst(t) for t in (f's_mov_b32 s{sT+3}, s{sS0}', f's_mov_b32 s{sS0}, s{sS1}', f's_mov_b32 s{sS1}, s{sS2}', f's_mov_b32 s{sS2}, s{sT+3}',
                                      f'v_mov_b32 v{vCUR}, v{vNXT}', f'v_add_u32 v{vNXT}, s{sS1}, v{vWB}', f'v_add_u32 v{vOA}, 4096, v{vOA}')]
        return out
    A(LW)
    A.extend(ostep(0, False, vm=8 + extra))
    A(f's_mov_b32 s{sCNT}, 6')
    o0 = len(A.L)
    A('KB_oloop:')
    A.extend(ostep(1, True)); A.extend(ostep(0, True))
    A(f's_sub_u32 s{sCNT}, s{sCNT}, 1\ns_cmp_lg_u32 s{sCNT}, 0\ns_cbranch_scc1 KB_oloop')
    o1 = len(A.L)
    A.extend(ostep(1, True))
    A.extend(ostep(0, False, vm=0))
    A.extend(ostep(1, False, lasto=True))
    stamp(A, cfg, 8)
    A(f's_mul_i32 s{sT}, s{sg}, {2048*896}\ns_mul_i32 s{sT+1}, s{srb}, {64*896}\ns_add_u32 s{sT}, s{sT}, s{sT+1}\ns_mul_i32 s{sT+1}, s{sw}, 224\ns_add_u32 s{sT}, s{sT}, s{sT+1}\ns_add_u32 s{sT}, s{sT}, {WS_PART}')
    A(f'v_and_b32 v{vT}, 15, v{vTID}\nv_mul_u32_u24 v{vT}, 896, v{vT}\nv_bfe_u32 v{vT+1}, v{vTID}, 4, 2')
    A(f'v_lshl_add_u32 v{vT+2}, v{vT+1}, 3, v{vT}')
    A(f'v_and_b32 v{vT+3}, 1, v{vT+1}\nv_lshlrev_b32 v{vT+3}, 5, v{vT+3}\nv_lshrrev_b32 v{vT+1}, 1, v{vT+1}\nv_lshl_add_u32 v{vT+3}, v{vT+1}, 4, v{vT+3}\nv_add_u32 v{vT+3}, v{vT+3}, v{vT}')
    fl = cfg.get('partflags', 'sc1')
    for c in range(4):
        for i in range(3):
            t = 128 + (c * 4 + i) * 4
            x, y = AC(2 * i, c), AC(2 * i + 1, c)
            A(f'v_cvt_pk_bf16_f32 v{t}, v{x}, v{x+1}\nv_cvt_pk_bf16_f32 v{t+1}, v{x+2}, v{x+3}\nv_cvt_pk_bf16_f32 v{t+2}, v{y}, v{y+1}\nv_cvt_pk_bf16_f32 v{t+3}, v{y+2}, v{y+3}')
            A(f'v_permlane16_swap_b32 v{t}, v{t+2}\nv_permlane16_swap_b32 v{t+1}, v{t+3}')
            A(f'buffer_store_dwordx4 {v(t,4)}, v{vT+3}, s[{sWS}:{sWS+3}], s{sT} offen offset:{64*i} {fl}')
        t = 128 + (c * 4 + 3) * 4; x = AC(6, c)
        A(f'v_cvt_pk_bf16_f32 v{t}, v{x}, v{x+1}\nv_cvt_pk_bf16_f32 v{t+1}, v{x+2}, v{x+3}')
        A(f'buffer_store_dwordx2 {v(t,2)}, v{vT+2}, s[{sWS}:{sWS+3}], s{sT} offen offset:192 {fl}')
        if c < 3: A(f's_add_u32 s{sT}, s{sT}, {16*896}')
    if cfg.get('stamp'):
        A('s_waitcnt vmcnt(0)'); stamp(A, cfg, 9); stamp_flush(A, cfg, 10, sWS, sw)
    A('KB_done:\ns_endpgm')
    L = A.L
    def resolve(L, loops):
        seq = []; idx = []
        pos = 0
        for (x0, x1) in loops:
            for i in range(pos, x1): seq.append(L[i]); idx.append(i)
            for i in range(x0, x1): seq.append(L[i]); idx.append(i)
            pos = x1
        for i in range(pos, len(L)): seq.append(L[i]); idx.append(i)
        res = auto_lgkm(seq)
        best = {}
        for r, i, o in zip(res, idx, seq):
            if o.kind == 'wait' and 'lgkmcnt(99)' in o.text:
                n = int(re.search(r'lgkmcnt\((\d+)\)', r.text).group(1))
                best[i] = min(best.get(i, 99), n)
        return [Inst(x.text.replace('lgkmcnt(99)', f'lgkmcnt({best[i]})')) if i in best else x for i, x in enumerate(L)]
    loops = [qwrap, (m0, m1), (o0, o1)]
    L = resolve(L, loops)
    marks = {}
    for k, (x0, x1) in enumerate(loops): marks[id(L[x0])] = ('s', k); marks[id(L[x1-1])] = ('e', k)
    n_before = len(L)
    L2 = fix_hazards(L)
    nl = [[0, 0] for _ in loops]
    for i, x in enumerate(L2):
        if id(x) in marks:
            t, k = marks[id(x)]
            nl[k][0 if t == 's' else 1] = i if t == 's' else i + 1
    for k, (x0, x1) in enumerate(nl):
        nops = [x.text for x in L2[x0:x1] if x.kind == 'nop']
        print(f'loop {k}: {x1-x0} instrs, mfma {sum(x.kind=="mfma" for x in L2[x0:x1])}, nops {nops}')
        bad = check_hazards(L2, 'kb', wrap=(x0, x1))
        assert not bad, bad[:5]
        bad = check_waits(L2, 'kb', wrap=(x0, x1))
        assert not bad, bad[:5]
    check_scc(L2)
    B = Asm(); B.L = L2
    return dict(name=name, text=kernel_header(name) + B.text(), nv=512, ns=102, acc=256, grid=256, block=256, lds=163840)
```

```python
from common import *
from ka import ln16
from kb import stamp, stamp_flush, MF, LW
KSL = 7424
LOG2E = 1.4426950408889634
GK0 = -2.0 * 0.7978845608028654 * LOG2E
GK1 = GK0 * 0.044715
def finish(A, name, nv, acc, block, lds, ns=102):
    L = auto_lgkm(A.L)
    L = fix_hazards(L)
    bad = check_waits(L, name); assert not bad, bad[:5]
    check_scc(L)
    B = Asm(); B.L = L
    return dict(name=name, text=kernel_header(name) + B.text(), nv=nv, ns=ns, acc=acc, grid=256, block=block, lds=lds)
def gelu(A, regs, t, sk0, sk1):
    for i, x in enumerate(regs): rnd(A, f'v{x}')
    for i, x in enumerate(regs): A(f'v_mul_f32 v{t+i}, v{x}, v{x}')
    for i, x in enumerate(regs): A(f'v_fma_f32 v{t+i}, v{t+i}, s{sk1}, v{sk0}')
    for i, x in enumerate(regs): A(f'v_mul_f32 v{t+i}, v{t+i}, v{x}')
    for i, x in enumerate(regs): A(f'v_exp_f32 v{t+i}, v{t+i}')
    for i, x in enumerate(regs): A(f'v_add_f32 v{t+i}, 1.0, v{t+i}')
    for i, x in enumerate(regs): A(f'v_rcp_f32 v{t+i}, v{t+i}')
    for i, x in enumerate(regs): A(f'v_mul_f32 v{x}, v{x}, v{t+i}')

def gen_t1(cfg, name='t1_kernel'):
    A = Asm()
    A('s_cmp_ge_u32 s2, 256\ns_cbranch_scc1 T1_done')
    A(f's_load_dwordx2 s[4:5], s[0:1], {WS}\ns_load_dwordx2 s[6:7], s[0:1], {A_X}')
    A('s_and_b32 s12, s2, 7\ns_lshr_b32 s13, s2, 6\ns_lshl_b32 s13, s13, 3\ns_add_u32 s12, s12, s13\ns_lshl_b32 s12, s12, 3\ns_bfe_u32 s13, s2, 0x30003\ns_add_u32 s12, s12, s13')
    A('s_mul_i32 s12, s12, 8*896')
    A('v_lshrrev_b32 v1, 4, v0\nv_mul_u32_u24 v1, 896, v1\nv_and_b32 v2, 15, v0\nv_lshl_add_u32 v1, v2, 3, v1\nv_lshlrev_b32 v2, 4, v2')
    A('v_lshrrev_b32 v3, 6, v0\nv_readfirstlane_b32 s24, v3')
    A('s_waitcnt lgkmcnt(0)')
    srd(A, 8, 6, 2048 * ROWB); srd(A, 16, 4, WS_USED)
    stamp(A, cfg, 0)
    A(f's_add_u32 s13, s12, {WS_PART}')
    P = 40
    for p in range(8):
        for t in range(7): A(f'buffer_load_dwordx2 {v(P+14*p+2*t,2)}, v1, s[16:19], s13 offen offset:{128*t}')
        if p < 7: A(f's_add_u32 s13, s13, {2048*896}')
    X = 152
    for t in range(7): A(f'buffer_load_dwordx2 {v(X+2*t,2)}, v1, s[8:11], s12 offen offset:{128*t}')
    MG, MO, MS = 168, 196, 224
    for base, seg in ((MG, 2), (MO, 4), (MS, 3)):
        A(f's_mov_b32 s14, {WS_MOD + seg*1792}')
        for t in range(7): A(f'buffer_load_dwordx4 {v(base+4*t,4)}, v2, s[16:19], s14 offen offset:{256*t}')
    A(f's_mov_b32 s20, {f32(1e-5)}\ns_mov_b32 s21, {f32(1.0/448)}')
    for p in range(8):
        A(f's_waitcnt vmcnt({min(63, 7*(7-p)+28)})')
        for i in range(14):
            r = P + 14 * p + i
            if p == 0: A(f'v_lshlrev_b32 v{8+2*i}, 16, v{r}\nv_and_b32 v{9+2*i}, 0xffff0000, v{r}')
            else: A(f'v_lshlrev_b32 v4, 16, v{r}\nv_and_b32 v5, 0xffff0000, v{r}\nv_add_f32 v{8+2*i}, v{8+2*i}, v4\nv_add_f32 v{9+2*i}, v{9+2*i}, v5')
    A('s_waitcnt vmcnt(0)')
    stamp(A, cfg, 1)
    for i in range(28):
        rnd(A, f'v{8+i}'); A(f'v_mul_f32 v{8+i}, v{8+i}, v{MG+i}'); rnd(A, f'v{8+i}')
    for i in range(14):
        A(f'v_lshlrev_b32 v4, 16, v{X+i}\nv_and_b32 v5, 0xffff0000, v{X+i}\nv_add_f32 v{8+2*i}, v{8+2*i}, v4\nv_add_f32 v{9+2*i}, v{9+2*i}, v5')
        A(f'v_cvt_pk_bf16_f32 v{P+i}, v{8+2*i}, v{9+2*i}')
    A(f's_add_u32 s13, s12, {WS_X2}')
    for t in range(7): A(f'buffer_store_dwordx2 {v(P+2*t,2)}, v1, s[16:19], s13 offen offset:{128*t}')
    for i in range(14): A(f'v_lshlrev_b32 v{8+2*i}, 16, v{P+i}\nv_and_b32 v{9+2*i}, 0xffff0000, v{P+i}')
    ln16(A, 8, 28, 4, 's20', 's21')
    for i in range(28):
        A(f'v_mul_f32 v{8+i}, v{8+i}, v{MO+i}'); rnd(A, f'v{8+i}'); A(f'v_add_f32 v{8+i}, v{8+i}, v{MS+i}')
    for i in range(14): A(f'v_cvt_pk_bf16_f32 v{P+14+i}, v{8+2*i}, v{9+2*i}')
    A(f's_add_u32 s13, s12, {WS_H}')
    for t in range(7): A(f'buffer_store_dwordx2 {v(P+14+2*t,2)}, v1, s[16:19], s13 offen offset:{128*t}')
    for i in range(14): A(f'v_lshlrev_b32 v{8+2*i}, 16, v{P+14+i}\nv_and_b32 v{9+2*i}, 0xffff0000, v{P+14+i}')
    ln16(A, 8, 28, 4, 's20', 's21')
    for i in range(14): A(f'v_cvt_pk_bf16_f32 v{P+28+i}, v{8+2*i}, v{9+2*i}')
    A(f's_add_u32 s13, s12, {WS_NN}')
    for t in range(7): A(f'buffer_store_dwordx2 {v(P+28+2*t,2)}, v1, s[16:19], s13 offen offset:{128*t}')
    if cfg.get('stamp'):
        A('s_waitcnt vmcnt(0)'); stamp(A, cfg, 2); stamp_flush(A, cfg, 3, 16, 24)
    A('T1_done:\ns_endpgm')
    return finish(A, name, 256, 256, 128, 0)

def prologue_gj(A, pre):
    A(f's_cmp_ge_u32 s2, 256\ns_cbranch_scc1 {pre}_done')
    A(f's_load_dwordx2 s[4:5], s[0:1], {WS}')
    A('v_lshrrev_b32 v1, 6, v0\nv_and_b32 v2, 63, v0\nv_readfirstlane_b32 s24, v1')
    A('s_and_b32 s25, s2, 7\ns_lshr_b32 s13, s2, 6\ns_lshl_b32 s13, s13, 3\ns_add_u32 s25, s25, s13\ns_bfe_u32 s26, s2, 0x30003')
    A('v_and_b32 v3, 15, v2\nv_lshrrev_b32 v4, 4, v2')

def gen_g32(cfg, kind, name):
    pre = kind.upper()
    nk = 56 if kind == 't5' else 14
    wslot = {'t2': B_W1, 't3': B_W2, 't5': B_W4}[kind]
    A = Asm()
    prologue_gj(A, pre)
    A(f's_load_dwordx2 s[6:7], s[0:1], {wslot}')
    if kind == 't5': A(f's_load_dwordx2 s[40:41], s[0:1], {OUT}')
    A('v_mul_u32_u24 v5, 4682, v2\nv_lshrrev_b32 v5, 16, v5\nv_mul_u32_u24 v6, 14, v5\nv_sub_u32 v6, v2, v6\nv_lshlrev_b32 v6, 4, v6')
    A('v_and_b32 v7, 1, v5\nv_mul_u32_u24 v7, 4*896, v7\nv_lshrrev_b32 v5, 1, v5\nv_mul_u32_u24 v5, 16*896, v5\nv_add3_u32 v5, v5, v6, v7')
    for j in range(4): A(f'v_add_u32 v{10+j}, {96-32*j}, v5')
    A('s_lshr_b32 s27, s26, 1\ns_and_b32 s28, s26, 1')
    A('s_and_b32 s29, s24, 1\ns_lshr_b32 s30, s24, 1')
    A('s_lshl_b32 s31, s25, 6\ns_lshl_b32 s13, s28, 5\ns_add_u32 s31, s31, s13\ns_lshl_b32 s13, s29, 4\ns_add_u32 s31, s31, s13')
    A('s_waitcnt lgkmcnt(0)')
    srd(A, 16, 4, WS_USED)
    A(f's_sub_u32 s8, s6, 96\ns_subb_u32 s9, s7, 0\ns_mov_b32 s10, {nk*32*896+96}\ns_mov_b32 s11, 0x20000')
    stamp(A, cfg, 0)
    A('s_lshr_b32 s13, s24, 1\ns_mul_i32 s32, s13, 32*896\ns_mul_i32 s33, s13, %d' % KSL)
    A('s_mul_i32 s13, s29, 8*896\ns_add_u32 s32, s32, s13\ns_mul_i32 s13, s29, 4*928\ns_add_u32 s33, s33, s13')
    A('s_mul_i32 s13, s27, 224\ns_add_u32 s32, s32, s13')
    A('s_mov_b32 s34, -1\ns_mov_b32 s35, 0x00ffffff')
    A('s_cmp_lt_u32 s24, 2\ns_cselect_b32 s36, -1, 0\ns_cselect_b32 s37, 0x00ffffff, 0')
    BF = 32
    if kind == 't2':
        A(f'v_mul_u32_u24 v14, 896, v3\nv_lshl_add_u32 v14, v4, 4, v14\ns_mul_i32 s38, s31, 896\ns_add_u32 s38, s38, {WS_NN}')
        bload = lambda st: f'buffer_load_dwordx4 {v(BF+4*st,4)}, v14, s[16:19], s38 offen offset:{64*st}'
    elif kind == 't3':
        A(f'v_mul_u32_u24 v14, 896, v3\nv_lshl_add_u32 v14, v4, 4, v14\ns_mul_i32 s38, s31, 896\ns_add_u32 s38, s38, {WS_H1}')
        A('v_add_u32 v15, 3584, v14\nv_cmp_gt_u32 vcc, 2, v4\nv_add_u32 v16, 896, v14\nv_add_u32 v17, 2688, v14\nv_cndmask_b32 v16, v17, v16, vcc\nv_cndmask_b32 v17, v15, v14, vcc')
        def bload(st):
            if st < 3: r, o = 14, 896
            elif st == 3: r, o = 16, 0
            elif st < 7: r, o = 14, 2688
            elif st < 10: r, o = 14, 0
            elif st == 10: r, o = 17, 0
            else: r, o = 15, 0
            return f'buffer_load_dwordx4 {v(BF+4*st,4)}, v{r}, s[16:19], s38 offen offset:{o+64*st}'
    else:
        A(f'v_mul_u32_u24 v14, 3584, v3\nv_lshl_add_u32 v14, v4, 4, v14\ns_mul_i32 s38, s31, 3584\ns_add_u32 s38, s38, {WS_G}')
        bload = lambda st: f'buffer_load_dwordx4 {v(BF+4*st,4)}, v14, s[16:19], s38 offen offset:{64*st}'
    nch = nk // 7
    def issue(ch):
        slot = ch % 3
        A('s_mov_b64 exec, s[34:35]')
        for q in range(4):
            if q == 3:
                A(f's_cmp_lt_u32 s24, 2\ns_cbranch_scc0 {pre}_skip{ch}')
            A(f's_add_u32 m0, s33, {slot*7*KSL + q*2*KSL}\ns_add_u32 s13, s32, {(ch*7+q*2)*32*896}')
            for j in range(4): A(f'buffer_load_dwordx4 v{10+j}, s[8:11], s13 offen offset:{928*j} lds')
        A(f'{pre}_skip{ch}:')
        A('s_mov_b64 exec, -1')
        for st in range(7): A(bload(ch * 7 + st))
    PER = 12 + 7
    for ch in range(min(3, nch)): issue(ch)
    A('v_bfe_u32 v18, v2, 2, 2\nv_and_b32 v19, 1, v4\nv_lshl_add_u32 v18, v19, 2, v18\nv_mul_u32_u24 v18, 928, v18')
    A('v_lshrrev_b32 v19, 1, v4\nv_mul_u32_u24 v19, 448, v19\nv_and_b32 v20, 3, v2\nv_lshlrev_b32 v20, 3, v20\nv_add3_u32 v18, v18, v19, v20')
    A('s_lshl_b32 s13, s30, 7\nv_add_u32 v18, s13, v18')
    A(f'v_add_u32 v19, {7*KSL}, v18\nv_add_u32 v20, {14*KSL}, v18')
    A('v_mul_u32_u24 v21, 896, v3\nv_lshl_add_u32 v22, v4, 3, v21')
    A('v_and_b32 v23, 1, v4\nv_lshlrev_b32 v23, 5, v23\nv_lshrrev_b32 v24, 1, v4\nv_lshl_add_u32 v23, v24, 4, v23\nv_add_u32 v23, v23, v21')
    A('s_mul_i32 s39, s31, 896\ns_mul_i32 s13, s27, 224\ns_add_u32 s39, s39, s13\ns_lshl_b32 s13, s30, 7\ns_add_u32 s39, s39, s13')
    AC = 0
    for i in range(16): A(f'v_accvgpr_write_b32 a{i}, 0')
    FR = lambda f: 16 + (f % 8) * 4
    def wr(f):
        st, i = f >> 2, f & 3
        ch = st // 7
        return [f'ds_read_b64_tr_b16 {a(FR(f)+2*h,2)}, v{18 + ch%3} offset:{(st%7)*KSL + i*32 + h*224}' for h in range(2)]
    LAF = 6
    for ch in range(nch):
        later = min(nch - 1, max(2, ch + 1)) - ch if ch > 0 else min(3, nch) - 1
        A(f's_waitcnt vmcnt({min(63, later*PER)})\ns_barrier')
        if ch == 0: stamp(A, cfg, 1)
        if ch >= 1 and ch + 2 < nch: issue(ch + 2)
        f0 = ch * 28
        for f in range(f0, f0 + LAF):
            for t in wr(f): A(t)
        for f in range(f0, f0 + 28):
            if f % 2 == 0: A(LW)
            A(f'{MF} {a(4*(f&3),4)}, {a(FR(f),4)}, {v(BF+4*(f>>2),4)}, {a(4*(f&3),4)}')
            if f + LAF < f0 + 28:
                for t in wr(f + LAF): A(t)
    stamp(A, cfg, 2)
    R = 32; E = 48
    if kind == 't3':
        A(f's_add_u32 s13, s39, {WS_H}')
        for i in range(4): A(f'buffer_load_dwordx2 {v(E+2*i,2)}, v22, s[16:19], s13 offen offset:{32*i}')
    if kind == 't5':
        A(f's_add_u32 s13, s39, {WS_X1}')
        for i in range(4): A(f'buffer_load_dwordx2 {v(E+2*i,2)}, v22, s[16:19], s13 offen offset:{32*i}')
        A(f's_add_u32 s13, s39, {WS_X2}')
        for i in range(4): A(f'buffer_load_dwordx2 {v(E+8+2*i,2)}, v22, s[16:19], s13 offen offset:{32*i}')
        A(f's_mul_i32 s13, s27, 448\ns_lshl_b32 s14, s30, 8\ns_add_u32 s13, s13, s14\ns_add_u32 s13, s13, {WS_MOD + 5*1792}\nv_lshlrev_b32 v24, 4, v4')
        for i in range(4): A(f'buffer_load_dwordx4 {v(E+16+4*i,4)}, v24, s[16:19], s13 offen offset:{64*i}')
    A('s_nop 7')
    for i in range(16): A(f'v_accvgpr_read_b32 v{R+i}, a{i}')
    if kind == 't2':
        A(f's_mov_b32 s20, {f32(GK1)}\nv_mov_b32 v25, {f32(GK0)}')
        gelu(A, list(range(R, R + 16)), 64, 25, 20)
        dst, dsrd, doff = WS_H1 + 2 * 896, 16, 39
    else:
        for i in range(16): rnd(A, f'v{R+i}')
        A('s_waitcnt vmcnt(0)')
        for i in range(8):
            A(f'v_lshlrev_b32 v25, 16, v{E+i}\nv_and_b32 v26, 0xffff0000, v{E+i}\nv_add_f32 v{R+2*i}, v{R+2*i}, v25\nv_add_f32 v{R+2*i+1}, v{R+2*i+1}, v26')
        dst, dsrd = WS_X1, 16
        if kind == 't5':
            for i in range(16):
                rnd(A, f'v{R+i}'); A(f'v_mul_f32 v{R+i}, v{R+i}, v{E+16+i}'); rnd(A, f'v{R+i}')
            for i in range(8):
                A(f'v_lshlrev_b32 v25, 16, v{E+8+i}\nv_and_b32 v26, 0xffff0000, v{E+8+i}\nv_add_f32 v{R+2*i}, v{R+2*i}, v25\nv_add_f32 v{R+2*i+1}, v{R+2*i+1}, v26')
            srd(A, 44, 40, 2048 * 896)
            dst, dsrd = 0, 44
    for i in range(8): A(f'v_cvt_pk_bf16_f32 v{96+i}, v{R+2*i}, v{R+2*i+1}')
    for p in range(2): A(f'v_permlane16_swap_b32 v{96+4*p}, v{98+4*p}\nv_permlane16_swap_b32 v{97+4*p}, v{99+4*p}')
    A(f's_add_u32 s13, s39, {dst}')
    A(f'buffer_store_dwordx4 v[96:99], v23, s[{dsrd}:{dsrd+3}], s13 offen')
    A('s_cmp_eq_u32 s30, 0\ns_cselect_b32 s14, -1, 0x0000ffff\ns_mov_b32 exec_lo, s14\ns_mov_b32 exec_hi, s14')
    A(f'buffer_store_dwordx4 v[100:103], v23, s[{dsrd}:{dsrd+3}], s13 offen offset:64')
    if cfg.get('stamp'):
        A('s_mov_b64 exec, -1\ns_waitcnt vmcnt(0)'); stamp(A, cfg, 3); stamp_flush(A, cfg, 4, 16, 24)
    A(f'{pre}_done:\ns_endpgm')
    nv = 256 if kind == 't5' else 104
    return finish(A, name, nv + 48, nv, 256, min(3, nch) * 7 * KSL + 256)

def gen_t4(cfg, name='t4_kernel'):
    A = Asm(); pre = 'T4'
    SL = 16 * 928
    prologue_gj(A, pre)
    A(f's_load_dwordx2 s[6:7], s[0:1], {B_W3}')
    A('v_cmp_lt_u32 vcc, 27, v2\nv_lshlrev_b32 v5, 4, v2\nv_add_u32 v6, %d, v5\nv_cndmask_b32 v5, v5, v6, vcc' % (4 * 3584 - 448))
    for j in range(4): A(f'v_add_u32 v{10+j}, {(3584-928)*j}, v5')
    A('s_lshl_b32 s31, s25, 6\ns_lshl_b32 s13, s24, 4\ns_add_u32 s31, s31, s13')
    A('s_waitcnt lgkmcnt(0)')
    srd(A, 16, 4, WS_USED); srd(A, 8, 6, 448 * 3584)
    stamp(A, cfg, 0)
    BF = 32
    A(f'v_mul_u32_u24 v14, 896, v3\nv_lshl_add_u32 v14, v4, 4, v14\ns_mul_i32 s38, s31, 896\ns_add_u32 s38, s38, {WS_X1}')
    for st in range(14): A(f'buffer_load_dwordx4 {v(BF+4*st,4)}, v14, s[16:19], s38 offen offset:{64*st}')
    A('s_mul_i32 s32, s24, 8*3584\ns_mul_i32 s13, s26, 448\ns_add_u32 s32, s32, s13\ns_mul_i32 s33, s24, 4*928')
    A('s_mov_b32 s34, -1\ns_mov_b32 s35, 0x00ffffff')
    def issue(st):
        A(f's_add_u32 m0, s33, {(st%10)*SL}\ns_add_u32 s13, s32, {st*32*3584}')
        for j in range(4): A(f'buffer_load_dwordx4 v{10+j}, s[8:11], s13 offen offset:{928*j} lds')
    A('s_mov_b64 exec, s[34:35]')
    for st in range(10): issue(st)
    A('s_mov_b64 exec, -1')
    A('v_bfe_u32 v18, v2, 2, 2\nv_lshl_add_u32 v18, v4, 2, v18\nv_mul_u32_u24 v18, 928, v18\nv_and_b32 v20, 3, v2\nv_lshl_add_u32 v18, v20, 3, v18')
    A(f'v_add_u32 v19, {4*SL}, v18\nv_add_u32 v20, {8*SL}, v18')
    A(f's_mov_b32 s20, {f32(1e-5)}\ns_mov_b32 s21, {f32(1.0/448)}')
    for i in range(56): A(f'v_accvgpr_write_b32 a{i}, 0')
    A('s_waitcnt vmcnt(40)')
    stamp(A, cfg, 1)
    X = 96; n = 112; t = 24
    for i in range(56): A(f'v_lshlrev_b32 v{X+2*i}, 16, v{BF+i}\nv_and_b32 v{X+2*i+1}, 0xffff0000, v{BF+i}')
    def allred(r):
        for sw_ in ('16', '32'): A(f'v_mov_b32 v{t+4}, v{r}\nv_permlane{sw_}_swap_b32 v{r}, v{t+4}\nv_add_f32 v{r}, v{r}, v{t+4}')
    A(f'v_pk_add_f32 {v(t,2)}, {v(X,2)}, {v(X+2,2)}\nv_pk_add_f32 {v(t+2,2)}, {v(X+4,2)}, {v(X+6,2)}')
    for i in range(8, n, 4): A(f'v_pk_add_f32 {v(t,2)}, {v(t,2)}, {v(X+i,2)}\nv_pk_add_f32 {v(t+2,2)}, {v(t+2,2)}, {v(X+i+2,2)}')
    A(f'v_pk_add_f32 {v(t,2)}, {v(t,2)}, {v(t+2,2)}\nv_add_f32 v{t}, v{t}, v{t+1}')
    allred(t)
    A(f'v_mul_f32 v{t}, s21, v{t}\nv_sub_f32 v{t+6}, 0, v{t}\nv_mov_b32 v{t+7}, v{t+6}\nv_mov_b32 v{t+2}, 0\nv_mov_b32 v{t+3}, 0\nv_mov_b32 v208, 0\nv_mov_b32 v209, 0')
    for i in range(0, n, 4):
        A(f'v_pk_add_f32 v[210:211], {v(X+i,2)}, {v(t+6,2)}\nv_pk_add_f32 v[212:213], {v(X+i+2,2)}, {v(t+6,2)}')
        A(f'v_pk_fma_f32 {v(t+2,2)}, v[210:211], v[210:211], {v(t+2,2)}\nv_pk_fma_f32 v[208:209], v[212:213], v[212:213], v[208:209]')
    A(f'v_pk_add_f32 {v(t+2,2)}, {v(t+2,2)}, v[208:209]\nv_add_f32 v{t+1}, v{t+2}, v{t+3}')
    allred(t + 1)
    A(f'v_mul_f32 v{t+1}, s21, v{t+1}')
    rnd(A, f'v{t}'); rnd(A, f'v{t+1}')
    A(f'v_add_f32 v{t+1}, s20, v{t+1}'); rnd(A, f'v{t+1}')
    A(f'v_sqrt_f32 v{t+1}, v{t+1}'); rnd(A, f'v{t+1}')
    A(f'v_rcp_f32 v{t+2}, v{t+1}\nv_sub_f32 v{t+6}, 0, v{t}\nv_mov_b32 v{t+7}, v{t+6}\nv_mov_b32 v{t+3}, v{t+2}')
    for i in range(0, n, 2):
        A(f'v_pk_add_f32 {v(X+i,2)}, {v(X+i,2)}, {v(t+6,2)}')
        rnd(A, f'v{X+i}'); rnd(A, f'v{X+i+1}')
        A(f'v_pk_mul_f32 {v(X+i,2)}, {v(X+i,2)}, {v(t+2,2)}')
        A(f'v_cvt_pk_bf16_f32 v{BF+i//2}, v{X+i}, v{X+i+1}')
    stamp(A, cfg, 2)
    FR = lambda f: 56 + (f % 8) * 4
    def wr(f):
        st, nb = divmod(f, 14)
        sl = st % 10
        return [f'ds_read_b64_tr_b16 {a(FR(f)+2*h,2)}, v{18 + sl//4} offset:{(sl%4)*SL + nb*32 + h*448}' for h in range(2)]
    LAF = 6
    for (s0, s1) in ((0, 4), (4, 10), (10, 14)):
        A(f's_waitcnt vmcnt({24 if s0 == 0 else (16 if s0 == 4 else 0)})\ns_barrier') if s0 != 4 else None
        if s0 == 4:
            A('s_waitcnt vmcnt(0)\ns_barrier\ns_mov_b64 exec, s[34:35]')
            for st in range(10, 14): issue(st)
            A('s_mov_b64 exec, -1')
        f0, f1 = s0 * 14, s1 * 14
        for f in range(f0, f0 + LAF):
            for x in wr(f): A(x)
        for f in range(f0, f1):
            if f % 2 == 0: A(LW)
            A(f'{MF} {a(4*(f%14),4)}, {a(FR(f),4)}, {v(BF+4*(f//14),4)}, {a(4*(f%14),4)}')
            if f + LAF < f1:
                for x in wr(f + LAF): A(x)
    stamp(A, cfg, 3)
    A('v_mul_u32_u24 v21, 3584, v3\nv_and_b32 v23, 1, v4\nv_lshlrev_b32 v23, 5, v23\nv_lshrrev_b32 v24, 1, v4\nv_lshl_add_u32 v23, v24, 4, v23\nv_add_u32 v23, v23, v21')
    A(f's_mul_i32 s39, s31, 3584\ns_mul_i32 s13, s26, 448\ns_add_u32 s39, s39, s13\ns_add_u32 s39, s39, {WS_G}')
    A(f's_mov_b32 s20, {f32(GK1)}\nv_mov_b32 v25, {f32(GK0)}\ns_nop 4')
    for p in range(7):
        R = 32 + 8 * p
        for i in range(8): A(f'v_accvgpr_read_b32 v{R+i}, a{8*p+i}')
        gelu(A, list(range(R, R + 8)), 96, 25, 20)
        q = 104 + 4 * p
        for i in range(4): A(f'v_cvt_pk_bf16_f32 v{q+i}, v{R+2*i}, v{R+2*i+1}')
        A(f'v_permlane16_swap_b32 v{q}, v{q+2}\nv_permlane16_swap_b32 v{q+1}, v{q+3}')
        A(f'buffer_store_dwordx4 {v(q,4)}, v23, s[16:19], s39 offen offset:{64*p}')
    if cfg.get('stamp'):
        A('s_waitcnt vmcnt(0)'); stamp(A, cfg, 4); stamp_flush(A, cfg, 5, 16, 24)
    A(f'{pre}_done:\ns_endpgm')
    return finish(A, name, 216 + 88, 216, 256, 10 * SL + 256)

def gen_tail(cfg):
    c = lambda i: dict(cfg, stamp=i if cfg.get('stamp') else 0)
    return [gen_t1(c(2)), gen_g32(c(3), 't2', 't2_kernel'), gen_g32(c(4), 't3', 't3_kernel'), gen_t4(c(5)), gen_g32(c(6), 't5', 't5_kernel')]
```

```python
import sys, json
from common import *
import ka, kb
def assemble(kernels, path):
    s = ''
    s += '; generated: adaLN + GQA attention + shift-mixer MLP block, gfx950\n'
    for k in kernels: s += f'; @launch kernel={k["name"]} grid=({k["grid"]},1,1) block=({k["block"]},1,1) lds={k["lds"]}\n'
    s += '.amdgcn_target "amdgcn-amd-amdhsa--gfx950"\n.text\n'
    seen = set()
    for k in kernels:
        if k['name'] in seen: continue
        seen.add(k['name']); s += k['text']
    s += '.section .rodata,"a"\n'
    seen = set()
    for k in kernels:
        if k['name'] in seen: continue
        seen.add(k['name']); s += KD.format(name=k['name'], nv=k['nv'], ns=k['ns'], acc=k['acc'], extra='')
    open(path, 'w').write(s)
DEF = dict(fma=True, round_s=False, lsum='mfma', bias=0.0, mimic_hm=True, smsplit=0.5, dma0=1, dmastep=4.0, stamp=0)
if __name__ == '__main__':
    cfg = dict(DEF)
    out = sys.argv[1]
    for kv in sys.argv[2:]:
        k, x = kv.split('='); cfg[k] = json.loads(x)
    ks = [ka.gen_ka(), kb.gen_kb(cfg)]
    try:
        import tail
        ks += tail.gen_tail(cfg)
    except ImportError: pass
    assemble(ks, out)
```
